```python
import torch

def _softmax(x, axis=-1):
    return torch.softmax(x, dim=axis)
def _gelu(x):
    return torch.nn.functional.gelu(x, approximate="tanh")
def _silu(x):
    return torch.nn.functional.silu(x)
def _sigmoid(x):
    return torch.sigmoid(x)
def _layernorm(x, axis=-1, eps=1e-5):
    m = x.mean(dim=axis, keepdim=True)
    v = x.var(dim=axis, keepdim=True, unbiased=False)
    return (x - m) / torch.sqrt(v + eps)
def _scatter_add(tgt, idx, src, axis=0):
    return tgt.clone().index_add_(axis, idx, src)
def _segment_sum(src, seg, n):
    out = torch.zeros((n,) + src.shape[1:], dtype=src.dtype)
    return out.index_add_(0, seg, src)
def _pad(x, pw):
    flat = tuple(v for pair in reversed(pw) for v in pair)
    return torch.nn.functional.pad(x, flat)

kernel_name = 'concat_heads__gqa_block_cached__compressed_kv_cla__decode'

def setup_inputs():

    _w = (lambda a: (lambda t: t.to(torch.bfloat16) if t.is_floating_point() else t)(torch.as_tensor(a)))
    def _A_setup():
        B, Sq, D = 1, 1, 448
        Hq, Hkv, Sk, Dh = 16, 8, 8192, 256
        assert Hq % Hkv == 0, (Hq, Hkv)
        return {
            "x": _w((lambda *s: torch.randn(*s, dtype=torch.bfloat16) * 1.6)(B, Sq, D)),
            "k_cache": _w((lambda *s: torch.randn(*s, dtype=torch.bfloat16) * 1.6)(B, Hkv, Sk, Dh)),
            "v_cache": _w((lambda *s: torch.randn(*s, dtype=torch.bfloat16) * 0.05)(B, Hkv, Sk, Dh)),
            "wq": _w((lambda *s: torch.randn(*s, dtype=torch.bfloat16) * 1.6)(D, Hq * Dh) * (D ** -0.5)),
            "wo": _w((lambda *s: torch.randn(*s, dtype=torch.bfloat16) * 0.05)(Hq * Dh, D) * ((Hq * Dh) ** -0.5)),
        }
    _A_in = _A_setup()

    def _B_setup():
        B, H, Sq, Sk, D, M = 1, 16, 1, 8192, 256, 448
        Dc = 4 * D
        return {
            "x": _w((lambda *s: torch.randn(*s, dtype=torch.bfloat16) * 3.2)(B, Sq, M)),
            "c_kv": _w((lambda *s: torch.randn(*s, dtype=torch.bfloat16) * 0.1)(B, Sk, Dc)),
            "w_q": _w((lambda *s: torch.randn(*s, dtype=torch.bfloat16) * 6.4)(M, H, D) * (M ** -0.5)),
            "w_uk": _w((lambda *s: torch.randn(*s, dtype=torch.bfloat16) * 6.4)(Dc, H, D) * (Dc ** -0.5)),
            "w_uv": _w((lambda *s: torch.randn(*s, dtype=torch.bfloat16) * 0.1)(Dc, H, D) * (Dc ** -0.5)),
            "w_o": _w((lambda *s: torch.randn(*s, dtype=torch.bfloat16) * 0.1)(H, D, M) * ((H * D) ** -0.5)),
        }
    _B_in = _B_setup()

    return {
        "A_x": _A_in["x"],
        "A_k_cache": _A_in["k_cache"],
        "A_v_cache": _A_in["v_cache"],
        "A_wq": _A_in["wq"],
        "A_wo": _A_in["wo"],
        "B_x": _B_in["x"],
        "B_c_kv": _B_in["c_kv"],
        "B_w_q": _B_in["w_q"],
        "B_w_uk": _B_in["w_uk"],
        "B_w_uv": _B_in["w_uv"],
        "B_w_o": _B_in["w_o"],
    }

def reference(A_x, A_k_cache, A_v_cache, A_wq, A_wo, B_x, B_c_kv, B_w_q, B_w_uk, B_w_uv, B_w_o):
    def _A_ref(x, k_cache, v_cache, wq, wo):
        B, Sq, D = x.shape
        Hq, Dh = 16, 256
        Hkv = k_cache.shape[1]
        rep = Hq // Hkv
        q = (lambda x, *d: x.permute(*d))((x @ wq).reshape(B, Sq, Hq, Dh), 0, 2, 1, 3)
        k = (lambda x, n, axis: torch.repeat_interleave(x, n, dim=axis))(k_cache, rep, axis=1)
        v = (lambda x, n, axis: torch.repeat_interleave(x, n, dim=axis))(v_cache, rep, axis=1)
        scores = torch.einsum("bhqd,bhkd->bhqk", q, k) * (Dh ** -0.5)
        p = _softmax(scores, axis=-1)
        o = torch.einsum("bhqk,bhkd->bhqd", p, v)
        return (lambda x, *d: x.permute(*d))(o, 0, 2, 1, 3).reshape(B, Sq, Hq * Dh) @ wo

    def _B_ref(x, c_kv, w_q, w_uk, w_uv, w_o):
        B, Sq, M = x.shape[0], x.shape[1], x.shape[2]
        Sk = c_kv.shape[1]
        H, D = w_q.shape[1], w_q.shape[2]
        q = torch.einsum("bqm,mhd->bhqd", x, w_q)
        k = torch.einsum("bkc,chd->bhkd", c_kv, w_uk)
        v = torch.einsum("bkc,chd->bhkd", c_kv, w_uv)
        scores = torch.einsum("bhqd,bhkd->bhqk", q, k) * (D ** -0.5)
        off = Sk - Sq
        qi = torch.arange(Sq)[:, None]
        kj = torch.arange(Sk)[None, :]
        cmask = kj <= (qi + off)
        scores = torch.where(cmask[None, None], scores, -1e9)
        p = _softmax(scores, axis=-1)
        ctx = torch.einsum("bhqk,bhkd->bhqd", p, v)
        return torch.einsum("bhqd,hdm->bqm", ctx, w_o)

    a = _A_ref(A_x, A_k_cache, A_v_cache, A_wq, A_wo)
    b = _B_ref(B_x, B_c_kv, B_w_q, B_w_uk, B_w_uv, B_w_o)
    return torch.concatenate([a, b], axis=-1)
```

```python
import re

def _regs(tok):
    tok = tok.strip()
    tok = tok.lstrip('-')
    if tok.startswith('abs(') or tok.startswith('|'):
        tok = tok.replace('abs(', '').replace(')', '').replace('|', '')
    m = re.fullmatch(r'([vs])(\d+)', tok)
    if m: return [(m.group(1), int(m.group(2)))]
    m = re.fullmatch(r'([vs])\[(\d+):(\d+)\]', tok)
    if m: return [(m.group(1), i) for i in range(int(m.group(2)), int(m.group(3)) + 1)]
    if tok in ('vcc', 'vcc_lo', 'vcc_hi'): return [('s', 'vcc')]
    if tok in ('exec', 'exec_lo', 'exec_hi'): return [('s', 'exec')]
    if tok == 'm0': return [('s', 'm0')]
    return []

TRANS = ('v_exp_f32', 'v_log_f32', 'v_rcp_f32', 'v_rsq_f32', 'v_sqrt_f32')

class Asm:
    def __init__(self):
        self.lines = []
        self.pos = 0
        self.w = {}
        self.mfma_c = {}
        self.store = {}
        self.nlabel = 0
    def raw(self, s):
        self.lines.append(s)
    def comment(self, s):
        self.lines.append('; ' + s)
    def label(self, name):
        self.lines.append(name + ':')
    def newlabel(self, p='L'):
        self.nlabel += 1
        return f'{p}_{self.nlabel}'
    def _need(self, reg, kinds, n):
        e = self.w.get(reg)
        if e and e[0] in kinds:
            return max(0, n - (self.pos - e[1] - 1))
        return 0
    def __call__(self, s):
        s = s.strip()
        mn, _, rest = s.partition(' ')
        qp = ''
        if 'quad_perm:' in rest:
            i = rest.index('quad_perm:'); qp = rest[i:]; rest = rest[:i].strip()
        ops = [o.strip() for o in rest.split(',')] if rest else []
        mods = ''
        if ops:
            last = ops[-1].split()
            if len(last) > 1:
                ops[-1] = last[0]; mods = ' '.join(last[1:])
        mods = (mods + ' ' + qp).strip()
        is_mfma = mn.startswith('v_mfma')
        is_valu = mn.startswith('v_') and not is_mfma
        is_vmem = mn.startswith('buffer_') or mn.startswith('global_')
        is_ds = mn.startswith('ds_')
        is_salu = mn.startswith('s_')
        dst = []; src = []
        if is_mfma:
            dst = _regs(ops[0]); srcA = _regs(ops[1]) + _regs(ops[2]); srcC = _regs(ops[3]); src = srcA + srcC
        elif is_valu:
            if mn.startswith('v_cmp'):
                dst = _regs(ops[0]); src = sum((_regs(o) for o in ops[1:]), [])
            elif mn.startswith('v_permlane') and 'swap' in mn:
                dst = _regs(ops[0]) + _regs(ops[1]); src = list(dst)
            elif mn in ('v_add_co_u32', 'v_addc_co_u32', 'v_sub_co_u32'):
                dst = _regs(ops[0]) + _regs(ops[1]); src = sum((_regs(o) for o in ops[2:]), [])
            else:
                dst = _regs(ops[0]); src = sum((_regs(o) for o in ops[1:]), [])
                if mn.startswith('v_fmac') or mn.startswith('v_dot2c') or mn.startswith('v_writelane') or 'dpp' in mn or 'row_' in mods or 'quad_perm' in mods:
                    src += dst
        elif is_vmem:
            if 'load' in mn and 'lds' not in mods.split():
                dst = _regs(ops[0]); src = sum((_regs(o) for o in ops[1:]), [])
            elif 'atomic' in mn:
                src = sum((_regs(o) for o in ops), []); dst = _regs(ops[0]) if 'sc0' in mods else []
            else:
                src = sum((_regs(o) for o in ops), [])
        elif is_ds:
            if mn.startswith('ds_read') or mn.startswith('ds_bpermute') or mn.startswith('ds_swizzle') or 'rtn' in mn:
                dst = _regs(ops[0]); src = sum((_regs(o) for o in ops[1:]), [])
            else:
                src = sum((_regs(o) for o in ops), [])
        elif is_salu:
            if mn.startswith('s_cmp') or mn.startswith('s_cbranch') or mn in ('s_waitcnt', 's_nop', 's_barrier', 's_branch', 's_endpgm', 's_sleep', 's_setprio'):
                src = sum((_regs(o) for o in ops), [])
            else:
                dst = _regs(ops[0]) if ops else []; src = sum((_regs(o) for o in ops[1:]), [])
        need = 0
        is_dpp = is_valu and ('row_' in mods or 'quad_perm' in mods or 'dpp' in mn)
        for r in src:
            if r[0] == 'v':
                if is_mfma:
                    need = max(need, self._need(r, ('valu', 'trans'), 2))
                    if r in srcA:
                        need = max(need, self._need(r, ('mfma4',), 8), self._need(r, ('mfma8',), 12))
                    else:
                        e = self.w.get(r)
                        if e and e[0].startswith('mfma') and e[2] != (tuple(srcC), mn):
                            need = max(need, self._need(r, ('mfma4',), 6), self._need(r, ('mfma8',), 10))
                else:
                    need = max(need, self._need(r, ('mfma4',), 8), self._need(r, ('mfma8',), 12))
                    if is_valu:
                        if mn not in TRANS: need = max(need, self._need(r, ('trans',), 1))
                        if mn.startswith('v_permlane') or is_dpp: need = max(need, self._need(r, ('valu', 'trans'), 2))
                        if mn.startswith('v_readlane') or mn.startswith('v_readfirstlane'): need = max(need, self._need(r, ('valu', 'trans'), 1))
                    elif is_vmem or is_ds:
                        need = max(need, self._need(r, ('trans',), 1))
            else:
                if is_valu or is_mfma:
                    if r[1] == 'exec': continue
                    need = max(need, self._need(r, ('valu',), 2))
                    if mn.startswith('v_readlane') or mn.startswith('v_writelane'):
                        need = max(need, self._need(r, ('valu',), 4))
                elif is_vmem:
                    need = max(need, self._need(r, ('valu',), 5))
                elif is_salu:
                    need = max(need, self._need(r, ('valu',), 1))
        if mn in ('s_cbranch_vccz', 's_cbranch_vccnz'):
            need = max(need, self._need(('s', 'vcc'), ('valu',), 5))
        if mn == 'v_cndmask_b32' and len(ops) < 4:
            need = max(need, self._need(('s', 'vcc'), ('valu',), 2))
        if is_vmem and 'lds' in mods.split():
            need = max(need, self._need(('s', 'm0'), ('salu',), 1))
        for r in dst:
            if r[0] == 'v':
                if not is_mfma:
                    need = max(need, self._need(r, ('mfma4',), 8), self._need(r, ('mfma8',), 12))
                    if r in self.mfma_c and is_valu:
                        need = max(need, max(0, 7 - (self.pos - self.mfma_c[r] - 1)))
                if r in self.store:
                    need = max(need, max(0, 2 - (self.pos - self.store[r] - 1)))
        while need > 0:
            k = min(need, 16)
            self.lines.append(f's_nop {k-1}')
            self.pos += k; need -= k
        self.lines.append(s)
        kind = None
        if is_mfma: kind = 'mfma8' if '32x32' in mn else 'mfma4'
        elif is_valu: kind = 'trans' if mn in TRANS else 'valu'
        elif is_salu: kind = 'salu'
        else: kind = 'mem'
        for r in dst:
            self.w[r] = (kind, self.pos, (tuple(dst), mn))
        if is_mfma:
            for r in srcC: self.mfma_c[r] = self.pos
        if is_vmem and 'store' in mn and ('x4' in mn or 'x3' in mn):
            for r in _regs(ops[0]): self.store[r] = self.pos
        if mn == 's_nop':
            self.pos += int(ops[0]) + 1
        else:
            self.pos += 1
    def settle(self, n=12):
        self(f's_nop {n-1}')
    def text(self):
        return '\n'.join(self.lines) + '\n'

def vr(b, n=4):
    return f'v[{b}:{b+n-1}]' if n > 1 else f'v{b}'
def sr(b, n=4):
    return f's[{b}:{b+n-1}]' if n > 1 else f's{b}'
```

```python
import sys
from asmlib import Asm, vr, sr
NAME = "concat_heads__gqa_block_cached__compressed_kv_cla__decode"

WS_STAMP = 0x1000
QREC = 0x20000; QABS = 0x40000; HQ = 0x48000; HL = 0x4A000; LST = 0x4C000
CTX = 0x50000; OST = 0x60000; OREC = 0x70000; OUTP = 0xB0000; LREC = 0x100000
WS_BYTES = 0x300000
TILE = 0
SC = 131072
RED8 = SC
RED2 = SC + 4096
QA = SC + 5120
SSCR = SC + 6144
MRG = SC + 22528
MRGS = SC + 30720
CT = SC + 31232
CT2 = SC + 31744
FLG = SC + 32000
F_C, F_QA, F_T, F_P1, F_SD, F_R, F_CT = [FLG + 4*i for i in range(7)]
LDS_BYTES = 163840
CEXP = 0x3DB8AA3B
SPIN = 200000

class G:
    def __init__(self, nt="nt", D=8, DB=12, stamps=True, round_s=True):
        self.a = Asm(); self.nt = nt; self.D = D; self.DB = DB; self.stamps = stamps; self.round_s = round_s
        self.ccount = 0
    def stamp(self, i):
        if not self.stamps: return
        a = self.a
        a("s_memrealtime vcc")
        a("s_waitcnt lgkmcnt(0)")
        a(f"v_writelane_b32 v12, vcc_lo, {i}")
    def srd(self, d, p, nbytes, off=None):
        a = self.a
        if off is None:
            a(f"s_mov_b32 s{d}, s{p}"); a(f"s_mov_b32 s{d+1}, s{p+1}")
        else:
            a(f"s_add_u32 s{d}, s{p}, {off}"); a(f"s_addc_u32 s{d+1}, s{p+1}, 0")
        a(f"s_mov_b32 s{d+2}, {nbytes}"); a(f"s_mov_b32 s{d+3}, 0x00020000")
    def lds_signal(self, addr):
        a = self.a
        a("s_waitcnt lgkmcnt(0)")
        a("s_mov_b64 exec, 1")
        a(f"ds_add_u32 v2, v3 offset:{addr - FLG}")
        a("s_mov_b64 exec, -1")
    def lds_wait(self, addr, target, sleep=0):
        a = self.a
        L = a.newlabel("LW"); E = a.newlabel("LE")
        a(f"s_mov_b32 s33, {SPIN}")
        a.label(L)
        a(f"ds_read_b32 v13, v2 offset:{addr - FLG}")
        a("s_sub_u32 s33, s33, 1")
        a(f"s_cbranch_scc1 {E}")
        a("s_waitcnt lgkmcnt(0)")
        a("v_readfirstlane_b32 s32, v13")
        a(f"s_cmp_ge_u32 s32, {target}")
        if sleep:
            a(f"s_cbranch_scc1 {E}")
            a(f"s_sleep {sleep}")
            a(f"s_branch {L}")
        else:
            a(f"s_cbranch_scc0 {L}")
        a.label(E)
        a("s_waitcnt lgkmcnt(0)")
    def csync(self):
        self.ccount += 4
        self.lds_signal(F_C)
        self.lds_wait(F_C, self.ccount)
    def spoll(self, nx16, soff, imm, mask, want):
        a = self.a
        L = a.newlabel("SP"); E = a.newlabel("SE")
        a(f"s_mov_b32 s33, {SPIN//8}")
        a.label(L)
        for i in range(nx16):
            a(f"s_load_dwordx16 s[{36+16*i}:{51+16*i}], s[12:13], {soff} offset:{imm+64*i} glc")
        a("s_sub_u32 s33, s33, 1")
        a(f"s_cbranch_scc1 {E}")
        a("s_waitcnt lgkmcnt(0)")
        n = 8 * nx16
        a("s_and_b64 s[28:29], s[36:37], s[38:39]")
        a("s_or_b64 s[30:31], s[36:37], s[38:39]")
        for i in range(2, n):
            a(f"s_and_b64 s[28:29], s[28:29], s[{36+2*i}:{37+2*i}]")
            a(f"s_or_b64 s[30:31], s[30:31], s[{36+2*i}:{37+2*i}]")
        a("s_and_b32 s28, s28, s29")
        a("s_or_b32 s30, s30, s31")
        a(f"s_xor_b32 s28, s28, {want}")
        a(f"s_xor_b32 s30, s30, {want}")
        a("s_or_b32 s28, s28, s30")
        a(f"s_and_b32 s28, s28, {mask}")
        a(f"s_cbranch_scc1 {L}")
        a.label(E)
        a("s_waitcnt lgkmcnt(0)")
    def vcheck(self, regs, mask, want, acc=14, first=True):
        a = self.a
        tmp = acc + 1
        a(f"v_xor_b32 v{tmp}, {want}, v{regs[0]}")
        for r in regs[1:]:
            a(f"v_bitop3_b32 v{tmp}, v{r}, {want}, v{tmp} bitop3:0xbe")
        if first:
            a(f"v_and_b32 v{acc}, {mask}, v{tmp}")
        else:
            a(f"v_and_b32 v{tmp}, {mask}, v{tmp}")
            a(f"v_or_b32 v{acc}, v{acc}, v{tmp}")
    def allred16(self, op, v):
        for n in (8, 4, 2, 1):
            self.a(f"{op} v{v}, v{v}, v{v} row_ror:{n} row_mask:0xf bank_mask:0xf")
    def xred(self, op, v, t, which):
        a = self.a
        a(f"v_mov_b32 v{t}, v{v}")
        a(f"v_permlane{which}_swap_b32 v{v}, v{t}")
        a(f"{op} v{v}, v{v}, v{t}")
    def tagpack(self, d, x0, x1, both=True):
        a = self.a
        a(f"v_add_u32 v{x0}, s19, v{x0}")
        if both:
            a(f"v_add_u32 v{x1}, s19, v{x1}")
            a(f"v_perm_b32 v{d}, v{x1}, v{x0}, v16")
            a(f"v_and_or_b32 v{d}, v{d}, v17, s18")
        else:
            raise NotImplementedError
    def red8(self, dst):
        a = self.a
        for cw in range(4):
            for rho in range(2):
                a(f"ds_read_b32 v{20+2*cw+rho}, v18 offset:{cw*1024 + rho*640}")
        a("s_waitcnt lgkmcnt(0)")
        a("v_add_f32 v20, v20, v21"); a("v_add_f32 v22, v22, v23"); a("v_add_f32 v24, v24, v25"); a("v_add_f32 v26, v26, v27")
        a("v_add_f32 v20, v20, v22"); a("v_add_f32 v24, v24, v26")
        a(f"v_add_f32 v{dst}, v20, v24")
    def w16_loads(self, ptr, rowfn, lanerows, s_rg, s_cg):
        a = self.a
        self.srd(4, ptr, 4096*896)
        a("v_lshrrev_b32 v20, 4, v1")
        a(f"v_mul_u32_u24 v20, {lanerows*896}, v20")
        a("v_and_b32 v21, 15, v1")
        a("v_lshl_add_u32 v20, v21, 4, v20")
        a(f"s_cmp_eq_u32 {s_cg}, 3")
        a("s_cselect_b32 s28, 8, 16")
        a("v_cmp_le_u32 vcc, s28, v21")
        a("v_mov_b32 v21, 0x7ff00000")
        a("v_cndmask_b32 v20, v20, v21, vcc")
        a(f"s_mul_i32 s28, {s_rg}, {64*896}")
        a(f"s_lshl_b32 s29, {s_cg}, 8")
        a("s_add_u32 s28, s28, s29")
        for t in range(16):
            a(f"s_add_u32 s29, s28, {rowfn(t)*896}")
            a(f"buffer_load_dwordx4 {vr(192+4*t)}, v20, s[4:7], s29 offen {self.nt}")
    def publish_out(self, P, acc, s_rg, s_cg):
        a = self.a
        for r in range(4):
            a(f"v_and_or_b32 v{20+r}, v{acc+r}, v19, s17")
        a("v_lshrrev_b32 v24, 4, v1"); a("v_lshlrev_b32 v24, 7, v24")
        a("v_and_b32 v25, 7, v1"); a("v_lshl_add_u32 v24, v25, 4, v24")
        a(f"s_lshl_b32 s28, {s_rg}, 11"); a(f"s_lshl_b32 s29, {s_cg}, 9"); a("s_add_u32 s28, s28, s29")
        a(f"s_add_u32 s28, s28, {OUTP + P*131072}")
        a("s_mov_b32 exec_lo, 0x00ff00ff")
        a(f"s_cmp_eq_u32 {s_cg}, 3")
        a("s_cselect_b32 exec_hi, 0, 0x00ff00ff")
        a(f"buffer_store_dwordx4 v[20:23], v24, s[12:15], s28 offen sc1")
        a("s_mov_b64 exec, -1")
    def reduce_out(self, P, s_n):
        a = self.a
        L = a.newlabel("RO"); E = a.newlabel("RE")
        a("v_lshlrev_b32 v24, 11, v1")
        a(f"s_lshl_b32 s28, {s_n}, 4"); a(f"s_add_u32 s28, s28, {OUTP + P*131072}")
        a(f"s_mov_b32 s33, {SPIN//8}")
        a.label(L)
        a("buffer_load_dwordx4 v[20:23], v24, s[12:15], s28 offen sc1")
        a("s_sub_u32 s33, s33, 1")
        a(f"s_cbranch_scc1 {E}")
        a("s_waitcnt vmcnt(0)")
        self.vcheck([20, 21, 22, 23], "0xff", "s17")
        a("v_cmp_ne_u32 vcc, 0, v14")
        a(f"s_cbranch_vccnz {L}")
        a.label(E)
        a("s_waitcnt vmcnt(0)")
        for r in range(4): a(f"v_and_b32 v{20+r}, v19, v{20+r}")
        a("v_permlane32_swap_b32 v20, v21"); a("v_permlane32_swap_b32 v22, v23")
        a("v_add_f32 v20, v20, v21"); a("v_add_f32 v22, v22, v23")
        a("v_permlane16_swap_b32 v20, v22")
        a("v_add_f32 v20, v20, v22")
        self.allred16("v_add_f32", 20)
        a("v_cvt_pk_bf16_f32 v20, v20, v20")
        a("v_lshrrev_b32 v21, 4, v1")
        a("v_lshlrev_b32 v22, 1, v21"); a("v_and_b32 v22, 2, v22"); a("v_lshrrev_b32 v21, 1, v21"); a("v_or_b32 v21, v21, v22")
        a("v_lshlrev_b32 v21, 4, v21")
        a(f"s_lshr_b32 s28, {s_n}, 3"); a("s_lshl_b32 s28, s28, 5"); a(f"s_and_b32 s29, {s_n}, 7"); a("s_add_u32 s28, s28, s29")
        a("s_lshl_b32 s28, s28, 1"); a(f"s_add_u32 s28, s28, {(0 if P == 0 else 448)*2}")
        self.srd(8, 26, 1792)
        a("s_mov_b32 exec_lo, 0x00010001"); a("s_mov_b32 exec_hi, 0x00010001")
        a("buffer_store_short v20, v21, s[8:11], s28 offen")
        a("s_mov_b64 exec, -1")
    def dump_stamps(self, slot):
        if not self.stamps: return
        a = self.a
        a("v_lshlrev_b32 v20, 2, v1")
        a("s_lshl_b32 s28, s2, 8"); a(f"s_add_u32 s28, s28, {WS_STAMP + slot*64}")
        a("s_mov_b64 exec, 0xffff")
        a("buffer_store_dword v12, v20, s[12:15], s28 offen")
        a("s_mov_b64 exec, -1")

    def build(self):
        a = self.a
        a.raw(f"; @launch grid=(256,1,1) block=(512,1,1) lds={LDS_BYTES}")
        a.raw('.amdgcn_target "amdgcn-amd-amdhsa--gfx950"')
        a.raw(".text"); a.raw(f".globl {NAME}_kernel"); a.raw(".p2align 8"); a.raw(f".type {NAME}_kernel,@function"); a.raw(f"{NAME}_kernel:")
        a("s_cmp_ge_u32 s2, 256"); a("s_cbranch_scc1 L_end")
        a("s_load_dwordx16 s[36:51], s[0:1], 0")
        a("s_load_dwordx8 s[52:59], s[0:1], 64")
        a("s_load_dwordx4 s[60:63], s[0:1], 96")
        a("v_and_b32 v1, 63, v0")
        a("v_lshrrev_b32 v13, 6, v0")
        a("v_mov_b32 v12, 0")
        a("v_readfirstlane_b32 s3, v13")
        a(f"v_mov_b32 v2, {FLG}")
        a("v_mov_b32 v3, 1")
        a("s_waitcnt lgkmcnt(0)")
        self.srd(12, 62, WS_BYTES)
        self.stamp(0)
        a("s_cmp_lt_u32 s3, 4"); a("s_cbranch_scc1 L_S")
        self.cwave()
        a.label("L_S")
        self.swave()
        a.label("L_end"); a("s_endpgm")
        a.raw('.section .rodata,"a"'); a.raw(".p2align 6"); a.raw(f".amdhsa_kernel {NAME}_kernel")
        a.raw("  .amdhsa_next_free_vgpr 256"); a.raw("  .amdhsa_next_free_sgpr 102"); a.raw("  .amdhsa_accum_offset 256")
        a.raw("  .amdhsa_group_segment_fixed_size 0"); a.raw("  .amdhsa_kernarg_size 112"); a.raw("  .amdhsa_user_sgpr_count 2")
        a.raw("  .amdhsa_user_sgpr_kernarg_segment_ptr 1"); a.raw("  .amdhsa_system_sgpr_workgroup_id_x 1"); a.raw(".end_amdhsa_kernel")
        return a.text()

    def consts(self):
        a = self.a
        a("v_and_b32 v13, 1, v1")
        a("v_cmp_eq_u32 vcc, 1, v13")
        a("v_mov_b32 v14, 0x0c0c0100"); a("v_mov_b32 v15, 0x01000c0c")
        a("v_cndmask_b32 v14, v14, v15, vcc")
        a("v_mov_b32 v20, 0x0c0c0302"); a("v_mov_b32 v15, 0x03020c0c")
        a("v_cndmask_b32 v15, v20, v15, vcc")
        a("v_bfe_u32 v13, v1, 1, 2")
        a("v_mov_b32 v20, 0x0c0c0c0c")
        for w in range(4):
            a(f"v_cmp_eq_u32 vcc, {w}, v13")
            a(f"v_cndmask_b32 v{4+w}, v20, v14, vcc")
            a(f"v_cndmask_b32 v{8+w}, v20, v15, vcc")
        a("v_mov_b32 v16, 0x07060302")
        a("v_mov_b32 v17, 0xfffefffe")
        a("v_mov_b32 v19, 0xffffff00")
    def tags(self):
        a = self.a
        a("s_waitcnt lgkmcnt(0)")
        a("s_add_u32 s16, s16, 0x01010101")
        a("s_and_b32 s17, s16, 0xff")
        a("s_and_b32 s18, s16, 1")
        a("s_cselect_b32 s18, 0x00010001, 0")
        a("s_cselect_b32 s19, 0, 0x10000")

    def cwave(self):
        a = self.a; nt = self.nt
        a("s_setprio 3")
        a("s_load_dword s16, s[12:13], 0")
        a("s_sub_u32 s3, s3, 4")
        a("s_mov_b64 s[20:21], s[54:55]")
        a("s_mov_b64 s[22:23], s[56:57]")
        a("s_mov_b64 s[24:25], s[44:45]")
        a("s_mov_b64 s[26:27], s[58:59]")
        a("s_cmp_ge_u32 s2, 128"); a("s_cbranch_scc1 C_noP1a")
        a("s_cmp_lt_u32 s2, 64")
        a("s_cselect_b32 s4, s50, s42"); a("s_cselect_b32 s5, s51, s43")
        a("s_cselect_b32 s8, s46, s36"); a("s_cselect_b32 s9, s47, s37")
        a(f"s_mov_b32 s6, {448*8192}"); a("s_mov_b32 s7, 0x00020000")
        a("s_mov_b32 s10, 896"); a("s_mov_b32 s11, 0x00020000")
        a("v_lshrrev_b32 v20, 3, v1")
        a("v_mul_u32_u24 v21, 28, v20")
        a("s_mul_i32 s28, s3, 224")
        a("buffer_load_dwordx4 v[24:27], v21, s[8:11], s28 offen")
        a("buffer_load_dwordx3 v[28:30], v21, s[8:11], s28 offen offset:16")
        a(f"v_mul_u32_u24 v20, {14*8192}, v20")
        a("v_and_b32 v21, 7, v1")
        a("v_lshl_add_u32 v20, v21, 4, v20")
        a(f"s_mul_i32 s28, s3, {112*8192}")
        a("s_and_b32 s29, s2, 63"); a("s_lshl_b32 s29, s29, 7"); a("s_add_u32 s28, s28, s29")
        for t in range(14):
            a(f"buffer_load_dwordx4 {vr(192+4*t)}, v20, s[4:7], s28 offen {nt}")
            if t != 13: a("s_add_u32 s28, s28, 8192")
        a.label("C_noP1a")
        self.srd(4, 52, 8 << 20)
        a("v_and_b32 v20, 15, v1"); a("v_lshlrev_b32 v20, 13, v20")
        a("v_lshrrev_b32 v21, 4, v1"); a("v_lshl_add_u32 v20, v21, 4, v20")
        a("s_and_b32 s28, s2, 15"); a("s_lshl_b32 s28, s28, 19")
        a("s_lshr_b32 s29, s2, 4"); a("s_lshl_b32 s29, s29, 9"); a("s_add_u32 s28, s28, s29")
        a("s_lshl_b32 s29, s3, 7"); a("s_add_u32 s28, s28, s29")
        for rb in range(4):
            for t in range(2):
                a(f"buffer_load_dwordx4 {vr(128 + 8*rb + 4*t)}, v20, s[4:7], s28 offen offset:{64*t} {nt}")
            if rb != 3: a(f"s_add_u32 s28, s28, {16*8192}")
        a("s_barrier")
        self.consts()
        a("v_lshrrev_b32 v20, 5, v1"); a("v_lshlrev_b32 v20, 8, v20")
        a("v_and_b32 v21, 7, v1"); a("v_lshl_add_u32 v20, v21, 4, v20")
        a("v_bfe_u32 v21, v1, 3, 2"); a("v_lshl_add_u32 v20, v21, 2, v20")
        a(f"v_add_u32 v18, {RED8}, v20")
        self.tags()
        a("s_cmp_ge_u32 s2, 128"); a("s_cbranch_scc1 C_noP1b")
        a("s_waitcnt vmcnt(22)")
        for t in range(14):
            for w in range(4):
                a(f"v_perm_b32 v{32+4*t+w}, v{24+t//2}, v{24+t//2}, v{(8 if t & 1 else 4)+w}")
        for t in range(14):
            a(f"s_waitcnt vmcnt({8 + 13 - t})")
            a(f"v_mfma_f32_16x16x32_bf16 v[88:91], {vr(192+4*t)}, {vr(32+4*t)}, {'0' if t == 0 else 'v[88:91]'}")
        a("s_lshl_b32 s28, s3, 10"); a(f"s_add_u32 s28, s28, {RED8}")
        a("v_lshl_add_u32 v20, v1, 4, s28")
        a("ds_write_b128 v20, v[88:91]")
        self.lds_signal(F_R)
        a("s_cmp_lg_u32 s3, 0"); a("s_cbranch_scc1 C_noP1b")
        self.lds_wait(F_R, 4)
        self.red8(20)
        a("v_cvt_pk_bf16_f32 v20, v20, v20")
        a("s_and_b32 s28, s16, 0xffff")
        a("v_mov_b32 v21, 0xffff0000")
        a("v_and_or_b32 v20, v20, v21, s28")
        a("v_lshlrev_b32 v21, 2, v1")
        a("s_lshl_b32 s28, s2, 8"); a(f"s_add_u32 s28, s28, {QREC}")
        a("buffer_store_dword v20, v21, s[12:15], s28 offen sc1")
        a("s_cmp_ge_u32 s2, 64"); a("s_cbranch_scc1 C_noP1b")
        for rep in range(1, 4):
            a("s_add_u32 s28, s28, 0x8000")
            a("buffer_store_dword v20, v21, s[12:15], s28 offen sc1")
        a.label("C_noP1b")
        a.settle()
        self.stamp(1)
        a("s_lshr_b32 s34, s2, 4"); a("s_lshl_b32 s34, s34, 2"); a("s_add_u32 s34, s34, s3"); a("s_lshl_b32 s34, s34, 8")
        a("s_and_b32 s35, s2, 3"); a("s_lshl_b32 s35, s35, 15"); a("s_add_u32 s34, s34, s35")
        self.spoll(4, "s34", QREC, "0xffff", "s16")
        a("s_cmp_lg_u32 s3, 1"); a("s_cbranch_scc1 C_noQA0")
        self.qa_issue()
        a.label("C_noQA0")
        for i in range(32):
            a(f"s_pack_hh_b32_b16 s{36+i}, s{36+2*i}, s{37+2*i}")
        for g in range(4):
            lo = (0xffff << (16*g)) & 0xffffffff if g < 2 else 0
            hi = (0xffff << (16*(g-2))) & 0xffffffff if g >= 2 else 0
            a(f"s_mov_b32 exec_lo, {lo:#x}"); a(f"s_mov_b32 exec_hi, {hi:#x}")
            for t in range(2):
                for w in range(4):
                    a(f"v_mov_b32 v{32+4*t+w}, s{36+16*t+4*g+w}")
        a("s_mov_b64 exec, -1")
        self.stamp(2)
        a("s_cmp_eq_u32 s3, 1"); a("s_cbranch_scc1 C_w2")
        a("s_cmp_eq_u32 s3, 0"); a("s_cbranch_scc1 C_w4")
        a("s_waitcnt vmcnt(0)"); a("s_branch C_wd")
        a.label("C_w2"); a("s_waitcnt vmcnt(2)"); a("s_branch C_wd")
        a.label("C_w4")
        a("s_cmp_lt_u32 s2, 64"); a("s_cbranch_scc1 C_w4b")
        a("s_cmp_lt_u32 s2, 128"); a("s_cbranch_scc1 C_w1")
        a("s_waitcnt vmcnt(0)"); a("s_branch C_wd")
        a.label("C_w1"); a("s_waitcnt vmcnt(1)"); a("s_branch C_wd")
        a.label("C_w4b"); a("s_waitcnt vmcnt(4)")
        a.label("C_wd")
        for rb in range(4):
            for t in range(2):
                a(f"v_mfma_f32_16x16x32_bf16 {vr(40+4*rb)}, {vr(128+8*rb+4*t)}, {vr(32+4*t)}, {'0' if t == 0 else vr(40+4*rb)}")
        a("s_lshl_b32 s28, s3, 8"); a(f"s_add_u32 s28, s28, {RED2}")
        a("v_add_u32 v20, s28, v1")
        a("s_mov_b32 exec_lo, 0x00010001"); a("s_mov_b32 exec_hi, 0x00010001")
        for rb in range(4):
            a(f"ds_write_b128 v20, {vr(40+4*rb)} offset:{64*rb}")
        a("s_mov_b64 exec, -1")
        self.ccount += 4
        self.lds_signal(F_C)
        a("s_cmp_lg_u32 s3, 0"); a("s_cbranch_scc1 C_noP2pub")
        self.lds_wait(F_C, self.ccount)
        a("v_lshlrev_b32 v20, 3, v1"); a("v_and_b32 v20, 0xff, v20"); a(f"v_add_u32 v20, {RED2}, v20")
        for cw in range(4):
            a(f"ds_read_b64 v[{22+2*cw}:{23+2*cw}], v20 offset:{256*cw}")
        a("s_waitcnt lgkmcnt(0)")
        for k in range(2):
            a(f"v_add_f32 v{22+k}, v{22+k}, v{24+k}"); a(f"v_add_f32 v{26+k}, v{26+k}, v{28+k}"); a(f"v_add_f32 v{22+k}, v{22+k}, v{26+k}")
        a("v_cvt_pk_bf16_f32 v23, v23, v23")
        a("v_add_u32 v22, s19, v22")
        a("v_perm_b32 v22, v23, v22, v16")
        a("v_and_b32 v22, 0xfffffffe, v22")
        a("s_and_b32 s28, s18, 1")
        a("v_or_b32 v22, s28, v22")
        a("v_lshlrev_b32 v21, 2, v1")
        a("s_lshl_b32 s28, s2, 7"); a(f"s_add_u32 s28, s28, {QABS}")
        a("s_mov_b32 exec_hi, 0")
        a("buffer_store_dword v22, v21, s[12:15], s28 offen sc1")
        a("v_lshlrev_b32 v21, 10, v1"); a("v_mov_b32 v23, s16")
        a("s_bfe_u32 s28, s2, 0x20002"); a("s_lshl_b32 s28, s28, 8")
        a("s_lshr_b32 s29, s2, 4"); a("s_lshl_b32 s29, s29, 4"); a("s_add_u32 s28, s28, s29")
        a("s_and_b32 s29, s2, 3"); a("s_lshl_b32 s29, s29, 2"); a("s_add_u32 s28, s28, s29")
        a(f"s_add_u32 s28, s28, {HQ}")
        a("s_mov_b32 exec_lo, 0xff")
        a("buffer_store_dword v23, v21, s[12:15], s28 offen sc1")
        a("s_mov_b64 exec, -1")
        a.label("C_noP2pub")
        a.settle()
        self.stamp(3)
        a("s_cmp_lg_u32 s3, 1"); a("s_cbranch_scc1 C_noQA1")
        self.qa_finish()
        a.label("C_noQA1")
        a.settle()
        a("s_lshr_b32 s100, s2, 5"); a("s_lshl_b32 s100, s100, 3"); a("s_and_b32 s28, s2, 7"); a("s_add_u32 s100, s100, s28")
        a("s_bfe_u32 s101, s2, 0x20003")
        self.srd(4, 20, 8 << 20)
        a("v_lshrrev_b32 v20, 3, v1"); a("v_lshlrev_b32 v20, 17, v20")
        a("v_and_b32 v21, 7, v1"); a("v_lshl_add_u32 v20, v21, 4, v20")
        a("s_and_b32 s28, s100, 3"); a("s_lshl_b32 s28, s28, 8")
        a("s_lshr_b32 s29, s3, 1"); a("s_lshl_b32 s29, s29, 7"); a("s_add_u32 s28, s28, s29")
        a("s_and_b32 s29, s3, 1"); a("s_lshl_b32 s29, s29, 3"); a("s_add_u32 s28, s28, s29")
        a("s_lshl_b32 s28, s28, 13")
        a("s_lshr_b32 s29, s100, 2"); a("s_lshl_b32 s29, s29, 9"); a("s_add_u32 s28, s28, s29")
        a("s_lshl_b32 s29, s101, 7"); a("s_add_u32 s28, s28, s29")
        for t in range(8):
            a(f"buffer_load_dwordx4 {vr(160+4*t)}, v20, s[4:7], s28 offen {nt}")
            if t != 7: a("s_add_u32 s28, s28, 8192")
        a("s_cmp_lt_u32 s2, 192"); a("s_cbranch_scc1 C_noB")
        self.battn()
        a.label("C_noB")
        a.settle()
        self.stamp(7)
        self.h4()
        self.tail()

    def qa_issue(self):
        a = self.a
        a("v_lshlrev_b32 v96, 4, v1")
        a("s_bfe_u32 s35, s2, 0x30003"); a("s_lshl_b32 s35, s35, 11"); a(f"s_add_u32 s35, s35, {QREC + 0x4000}")
        a("buffer_load_dwordx4 v[100:103], v96, s[12:15], s35 offen sc1")
        a("buffer_load_dwordx4 v[104:107], v96, s[12:15], s35 offen offset:1024 sc1")
    def qa_finish(self):
        a = self.a
        L = a.newlabel("QA"); E = a.newlabel("QE")
        a(f"s_mov_b32 s33, {SPIN//8}")
        a.label(L)
        a("s_waitcnt vmcnt(0)")
        self.vcheck(list(range(100, 108)), "0xffff", "s16")
        a("v_cmp_ne_u32 vcc, 0, v14")
        a(f"s_cbranch_vccz {E}")
        a("s_sub_u32 s33, s33, 1")
        a(f"s_cbranch_scc1 {E}")
        self.qa_issue()
        a(f"s_branch {L}")
        a.label(E)
        for i in range(4):
            a(f"v_perm_b32 v{20+i}, v{101+2*i}, v{100+2*i}, v16")
        a("v_lshlrev_b32 v24, 3, v1"); a(f"v_add_u32 v24, {QA}, v24")
        a("ds_write_b64 v24, v[20:21]")
        a("ds_write_b64 v24, v[22:23] offset:512")
        self.lds_signal(F_QA)

    def battn(self):
        a = self.a
        def swz(vd, vk, t):
            a(f"v_and_b32 v{vd}, 7, v{vk}"); a(f"v_lshlrev_b32 v{vd}, 1, v{vd}")
            a(f"v_lshrrev_b32 v{t}, 3, v{vk}"); a(f"v_or_b32 v{vd}, v{vd}, v{t}")
        a("s_lshl_b32 s34, s3, 9")
        a("v_and_b32 v20, 15, v1"); swz(21, 20, 22)
        a("v_lshrrev_b32 v22, 4, v1"); a("v_lshlrev_b32 v22, 1, v22")
        a("v_xor_b32 v21, v21, v22"); a("v_lshlrev_b32 v21, 4, v21")
        a("v_lshl_add_u32 v21, v20, 11, v21"); a("v_add_u32 v21, s34, v21")
        for v in range(4):
            x = (8*(v >> 1) + (v & 1)) * 16
            a(f"v_xor_b32 v{80+v}, {x}, v21")
            a(f"v_add_u32 v{84+v}, 0x10000, v{80+v}")
        a("v_lshrrev_b32 v20, 2, v1"); swz(21, 20, 22)
        a("v_bfe_u32 v22, v1, 1, 1"); a("v_xor_b32 v21, v21, v22"); a("v_lshlrev_b32 v21, 4, v21")
        a("v_and_b32 v22, 1, v1"); a("v_lshl_add_u32 v21, v22, 3, v21")
        a("v_lshl_add_u32 v21, v20, 11, v21"); a("v_add_u32 v21, s34, v21")
        for c in range(8):
            a(f"v_xor_b32 v{88+c}, {c*32}, v21")
            a(f"v_add_u32 v{96+c}, 0x10000, v{88+c}")
        a("v_and_b32 v30, 15, v1"); a("v_lshlrev_b32 v30, 11, v30"); a("v_lshrrev_b32 v31, 4, v1"); a("v_lshl_add_u32 v30, v31, 5, v30")
        a("s_and_b32 s34, s2, 7"); a("s_lshl_b32 s34, s34, 10"); a("s_lshl_b32 s35, s3, 8"); a("s_add_u32 s34, s34, s35")
        self.spoll(4, "s34", HQ, "-1", "s16")
        self.stamp(4)
        L = a.newlabel("QB"); E = a.newlabel("QBE")
        a("s_lshl_b32 s35, s3, 9"); a(f"s_add_u32 s35, s35, {QABS}")
        a(f"s_mov_b32 s33, {SPIN//8}")
        a.label(L)
        for t in range(8):
            a(f"buffer_load_dwordx4 {vr(32+4*t)}, v30, s[12:15], s35 offen offset:{128*(t>>1)+16*(t&1)} sc1")
        a("s_sub_u32 s33, s33, 1")
        a(f"s_cbranch_scc1 {E}")
        a("s_waitcnt vmcnt(0)")
        self.vcheck(list(range(32, 64)), "1", "s18")
        a("v_cmp_ne_u32 vcc, 0, v14")
        a(f"s_cbranch_vccnz {L}")
        a.label(E)
        a("s_waitcnt vmcnt(0)")
        self.stamp(5)
        a(f"s_mov_b32 s35, {CEXP:#x}")
        a("s_lshl_b32 s34, s3, 12"); a(f"s_add_u32 s34, s34, {SSCR}")
        a("v_lshl_add_u32 v28, v1, 4, s34")
        a("v_lshlrev_b32 v29, 4, v1"); a(f"v_add_u32 v29, {SSCR}, v29")
        M, Lr = 26, 27
        for ps in range(2):
            self.lds_wait(F_T, 4 * (ps + 1))
            seq = [(kb, t) for kb in range(4) for t in range(8)]
            NB = 12
            def rd(i):
                kb, t = seq[i]; u = t >> 1
                v = (u & 1) * 2 + (t & 1)
                base = (80 if kb < 2 else 84) + v
                a(f"ds_read_b128 {vr(104+4*(i % NB))}, v{base} offset:{(kb & 1)*32768 + (u >> 1)*256}")
            for i in range(NB): rd(i)
            for i in range(32):
                kb, t = seq[i]
                issued = min(32, i + NB)
                a(f"s_waitcnt lgkmcnt({min(15, issued - 1 - i)})")
                a(f"v_mfma_f32_16x16x32_bf16 {vr(64+4*kb)}, {vr(104+4*(i % NB))}, {vr(32+4*t)}, {'0' if t == 0 else vr(64+4*kb)}")
                if i + NB < 32: rd(i + NB)
            for kb in range(4):
                a(f"ds_write_b128 v28, {vr(64+4*kb)} offset:{1024*kb}")
            self.lds_signal(F_P1); self.lds_wait(F_P1, 8 * ps + 4)
            for w in range(4):
                for kb in range(4):
                    dst = (64 if w == 0 else 104 + 16*(w-1)) + 4*kb
                    a(f"ds_read_b128 {vr(dst)}, v29 offset:{4096*w + 1024*kb}")
            a("s_waitcnt lgkmcnt(0)")
            for i in range(16):
                a(f"v_add_f32 v{64+i}, v{64+i}, v{104+i}")
                a(f"v_add_f32 v{120+i}, v{120+i}, v{136+i}")
            for i in range(16):
                a(f"v_add_f32 v{64+i}, v{64+i}, v{120+i}")
            lseq = [(cb, s) for cb in range(16) for s in range(2)]
            def trd(i):
                cb, s = lseq[i]
                base = (88 if s == 0 else 96) + (cb & 7)
                b = 104 + 4*(i % NB)
                a(f"ds_read_b64_tr_b16 v[{b}:{b+1}], v{base} offset:{(cb >> 3)*256}")
                a(f"ds_read_b64_tr_b16 v[{b+2}:{b+3}], v{base} offset:{(cb >> 3)*256 + 32768}")
            NT = 7
            for i in range(NT): trd(i)
            a("v_max3_f32 v20, v64, v65, v66")
            for i in range(3, 15, 2):
                a(f"v_max3_f32 v20, v20, v{64+i}, v{65+i}")
            a("v_max_f32 v20, v20, v79")
            self.xred("v_max_f32", 20, 21, 16); self.xred("v_max_f32", 20, 21, 32)
            a("v_mul_f32 v20, s35, v20")
            a("v_and_b32 v20, v19, v20")
            if ps == 1:
                a(f"v_max_f32 v20, v20, v{M}")
                a(f"v_sub_f32 v22, v{M}, v20"); a("v_exp_f32 v22, v22")
            a(f"v_mov_b32 v{M}, v20")
            for i in range(16):
                a(f"v_fma_f32 v{64+i}, v{64+i}, s35, -v{M}")
            for i in range(16):
                a(f"v_exp_f32 v{64+i}, v{64+i}")
            if ps == 1:
                a(f"v_mul_f32 v{Lr}, v{Lr}, v22")
                a(f"v_add_f32 v{Lr}, v{Lr}, v64")
            else:
                a(f"v_mov_b32 v{Lr}, v64")
            for i in range(1, 16):
                a(f"v_add_f32 v{Lr}, v{Lr}, v{64+i}")
            for i in range(8):
                a(f"v_cvt_pk_bf16_f32 v{64+i}, v{64+2*i}, v{65+2*i}")
            if ps == 1:
                a("v_lshrrev_b32 v21, 4, v1"); a("v_lshlrev_b32 v21, 4, v21")
                for r in range(4):
                    a(f"ds_bpermute_b32 v{72+r}, v21, v22 offset:{4*r}")
                a(f"v_mov_b32 v23, v{Lr}")
                self.xred("v_add_f32", 23, 24, 16); self.xred("v_add_f32", 23, 24, 32)
                a("s_cmp_lg_u32 s3, 0"); a("s_cbranch_scc1 C_noLST")
                a(f"v_or_b32 v24, s17, v{M}")
                a("v_and_or_b32 v25, v23, v19, s17")
                a("v_lshlrev_b32 v21, 9, v1")
                a("s_sub_u32 s28, s2, 192"); a("s_lshl_b32 s28, s28, 3"); a(f"s_add_u32 s28, s28, {LST}")
                a("s_mov_b64 exec, 0xffff")
                a("buffer_store_dwordx2 v[24:25], v21, s[12:15], s28 offen sc1")
                a("s_mov_b64 exec, -1")
                a.label("C_noLST")
                a("s_waitcnt lgkmcnt(0)")
                for cb in range(16):
                    for r in range(4):
                        a(f"v_mul_f32 v{192+4*cb+r}, v{192+4*cb+r}, v{72+r}")
            for i in range(32):
                cb, s = lseq[i]
                issued = min(32, i + NT)
                a(f"s_waitcnt lgkmcnt({min(15, 2*(issued - 1 - i))})")
                c = '0' if (ps == 0 and s == 0) else vr(192+4*cb)
                a(f"v_mfma_f32_16x16x32_bf16 {vr(192+4*cb)}, {vr(64+4*s)}, {vr(104+4*(i % NB))}, {c}")
                if i + NT < 32: trd(i + NT)
            if ps == 0:
                self.lds_signal(F_P1)
                self.stamp(6)
        a("v_lshrrev_b32 v20, 4, v1"); a("v_lshlrev_b32 v20, 19, v20")
        a("v_and_b32 v21, 15, v1"); a("v_lshl_add_u32 v20, v21, 4, v20")
        a("s_sub_u32 s28, s2, 192"); a("s_lshl_b32 s28, s28, 9")
        a("s_lshl_b32 s29, s3, 15"); a("s_add_u32 s28, s28, s29"); a(f"s_add_u32 s28, s28, {LREC}")
        k = 0
        for r in range(4):
            for half in range(2):
                b = 104 + 4*(k % 8); k += 1
                for j in range(4):
                    cb = 8*half + 2*j
                    self.tagpack(b+j, 192+4*cb+r, 192+4*(cb+1)+r)
                a(f"buffer_store_dwordx4 {vr(b)}, v20, s[12:15], s28 offen offset:{256*half} sc1")
            if r != 3: a(f"s_add_u32 s28, s28, {4*32768}")
        a("v_lshlrev_b32 v21, 10, v1"); a("v_mov_b32 v23, s16")
        a("s_sub_u32 s28, s2, 192"); a("s_lshl_b32 s28, s28, 2"); a("s_lshl_b32 s29, s3, 8"); a("s_add_u32 s28, s28, s29")
        a(f"s_add_u32 s28, s28, {HL}")
        a("s_mov_b64 exec, 0xff")
        a("buffer_store_dword v23, v21, s[12:15], s28 offen sc1")
        a("s_mov_b64 exec, -1")

    def h4(self):
        a = self.a
        a("v_lshrrev_b32 v30, 4, v1"); a("v_lshlrev_b32 v30, 9, v30"); a("v_and_b32 v31, 15, v1"); a("v_lshl_add_u32 v30, v31, 4, v30")
        a("v_add_u32 v31, 0x1000, v30")
        a("v_lshlrev_b32 v29, 3, v1")
        a("v_and_b32 v20, 8, v1"); a("v_cmp_ne_u32 vcc, 0, v20")
        for w in range(4): a(f"v_cndmask_b32 v{80+w}, v{4+w}, v{8+w}, vcc")
        a("v_lshrrev_b32 v84, 4, v1"); a("s_lshl_b32 s28, s3, 4"); a("v_add_u32 v84, s28, v84"); a("v_lshlrev_b32 v84, 2, v84")
        a("s_lshl_b32 s28, s3, 11"); a(f"s_add_u32 s28, s28, {SSCR}"); a("v_lshl_add_u32 v85, v1, 4, s28")
        a("s_lshr_b32 s28, s3, 1"); a("s_lshl_b32 s28, s28, 10"); a("s_and_b32 s29, s3, 1"); a("s_lshl_b32 s29, s29, 9"); a("s_add_u32 s28, s28, s29")
        a(f"s_add_u32 s28, s28, {SSCR}")
        a("v_lshrrev_b32 v86, 3, v1"); a("v_lshl_add_u32 v86, v86, 4, s28")
        a("s_bfe_u32 s34, s100, 0x30002"); a("s_lshl_b32 s34, s34, 10")
        a("s_and_b32 s35, s100, 3"); a("s_lshl_b32 s35, s35, 8"); a("s_add_u32 s34, s34, s35")
        a("s_lshl_b32 s35, s3, 6"); a("s_add_u32 s34, s34, s35")
        self.spoll(1, "s34", HL, "-1", "s16")
        self.csync()
        self.stamp(8)
        L = a.newlabel("G4"); E = a.newlabel("G4E")
        a("s_lshl_b32 s34, s100, 15"); a("s_lshl_b32 s35, s3, 13"); a("s_add_u32 s34, s34, s35"); a(f"s_add_u32 s34, s34, {LREC}")
        a("s_lshr_b32 s35, s100, 2"); a("s_lshl_b32 s35, s35, 9"); a(f"s_add_u32 s35, s35, {LST}")
        a(f"s_mov_b32 s33, {SPIN//8}")
        a.label(L)
        a("buffer_load_dwordx2 v[64:65], v29, s[12:15], s35 offen sc1")
        for tt in range(4):
            for half in range(2):
                a(f"buffer_load_dwordx4 {vr(32+8*tt+4*half)}, v{30 + (tt >> 1)}, s[12:15], s34 offen offset:{(tt & 1)*2048 + half*256} sc1")
        a("s_sub_u32 s33, s33, 1")
        a(f"s_cbranch_scc1 {E}")
        a("s_waitcnt vmcnt(0)")
        self.vcheck(list(range(32, 64)), "0x00010001", "s18")
        self.vcheck([64, 65], "0xff", "s17", first=False)
        a("v_cmp_ne_u32 vcc, 0, v14")
        a(f"s_cbranch_vccnz {L}")
        a.label(E)
        a("s_waitcnt vmcnt(0)")
        self.stamp(9)
        a("s_cmp_lg_u32 s3, 1"); a("s_cbranch_scc1 C_noWo1")
        a("s_and_b32 s34, s100, 0x3c"); a("s_add_u32 s34, s34, s101"); a("s_and_b32 s35, s100, 3")
        self.w16_loads(22, lambda t: t, 16, "s34", "s35")
        a.label("C_noWo1")
        a("s_cmp_lg_u32 s3, 0"); a("s_cbranch_scc1 C_noWo0")
        self.w16_loads(24, lambda t: 32*(t >> 3) + 2*(t & 3) + ((t >> 2) & 1), 8, "s100", "s101")
        a.label("C_noWo0")
        a.settle(6)
        a("v_and_b32 v64, v19, v64"); a("v_and_b32 v65, v19, v65")
        a("v_mov_b32 v66, v64")
        self.allred16("v_max_f32", 66); self.xred("v_max_f32", 66, 67, 16); self.xred("v_max_f32", 66, 67, 32)
        a("v_sub_f32 v64, v64, v66"); a("v_exp_f32 v64, v64")
        a("v_mul_f32 v65, v64, v65")
        self.allred16("v_add_f32", 65); self.xred("v_add_f32", 65, 67, 16); self.xred("v_add_f32", 65, 67, 32)
        a("v_rcp_f32 v65, v65")
        a("v_mul_f32 v64, v64, v65")
        a("v_cvt_pk_bf16_f32 v66, v64, v64"); a("v_lshlrev_b32 v66, 16, v66"); a("v_sub_f32 v66, v64, v66")
        a("v_cvt_pk_bf16_f32 v64, v64, v66")
        for tt in range(4):
            a(f"ds_bpermute_b32 v{68+tt}, v84, v64 offset:{16*tt}")
        a("s_waitcnt lgkmcnt(0)")
        for tt in range(4):
            for w in range(4):
                a(f"v_perm_b32 v{88+4*tt+w}, v{68+tt}, v{68+tt}, v{80+w}")
        for tt in range(4):
            for half in range(2):
                a(f"v_mfma_f32_16x16x32_bf16 {vr(72+4*half)}, {vr(32+8*tt+4*half)}, {vr(88+4*tt)}, {'0' if tt == 0 else vr(72+4*half)}")
        a("ds_write_b128 v85, v[72:75]")
        a("ds_write_b128 v85, v[76:79] offset:1024")
        self.csync()
        for tq in range(2):
            for w in range(4):
                for sel in range(2):
                    a(f"ds_read_b128 {vr(96 + 32*tq + 8*w + 4*sel)}, v86 offset:{2048*w + 256*tq + 128*sel}")
        a("s_waitcnt lgkmcnt(0)")
        for tq in range(2):
            b = 96 + 32*tq
            for st in (16, 8, 4):
                for i in range(st):
                    a(f"v_add_f32 v{b+i}, v{b+i}, v{b+st+i}")
        a("v_cvt_pk_bf16_f32 v64, v96, v97"); a("v_cvt_pk_bf16_f32 v65, v98, v99")
        a("v_cvt_pk_bf16_f32 v66, v128, v129"); a("v_cvt_pk_bf16_f32 v67, v130, v131")
        for t in range(8):
            for w in range(4):
                a(f"v_perm_b32 v{32+4*t+w}, v{64+t//2}, v{64+t//2}, v{(8 if t & 1 else 4)+w}")
        for t in range(8):
            a(f"v_mfma_f32_16x16x32_bf16 v[72:75], {vr(160+4*t)}, {vr(32+4*t)}, {'0' if t == 0 else 'v[72:75]'}")
        a("s_lshl_b32 s28, s3, 10"); a(f"s_add_u32 s28, s28, {RED8}")
        a("v_lshl_add_u32 v20, v1, 4, s28")
        a("ds_write_b128 v20, v[72:75]")
        self.ccount += 4
        self.lds_signal(F_C)
        a("s_and_b32 s34, s100, 0x3c"); a("s_add_u32 s34, s34, s101"); a("s_lshl_b32 s34, s34, 9")
        a("s_cmp_lg_u32 s3, 0"); a("s_cbranch_scc1 C_H5")
        self.lds_wait(F_C, self.ccount)
        self.red8(28)
        a("v_mov_b32 v29, v28 quad_perm:[1,0,3,2] row_mask:0xf bank_mask:0xf")
        self.tagpack(28, 28, 29)
        a("v_lshlrev_b32 v21, 1, v1")
        a("s_and_b32 s35, s100, 3"); a("s_lshl_b32 s35, s35, 7"); a("s_add_u32 s35, s35, s34"); a(f"s_add_u32 s35, s35, {CTX}")
        a(f"v_add_u32 v22, {CT}, v21")
        a("s_mov_b32 exec_lo, 0x55555555"); a("s_mov_b32 exec_hi, 0x55555555")
        a("buffer_store_dword v28, v21, s[12:15], s35 offen sc1")
        a("ds_write_b32 v22, v28")
        a("s_mov_b64 exec, -1")
        self.lds_signal(F_CT)
        self.stamp(10)
        a("s_branch C_T0")
        a.label("C_H5")
        a("s_add_u32 s35, s100, s3"); a("s_and_b32 s35, s35, 3"); a("s_lshl_b32 s35, s35, 7"); a("s_add_u32 s34, s34, s35")
        self.spoll(2, "s34", CTX, "0x00010001", "s18")
        a("v_mov_b32 v20, 0")
        for i in range(32):
            a(f"v_writelane_b32 v20, s{36+i}, {i}")
        a("s_lshl_b32 s28, s3, 7"); a(f"s_add_u32 s28, s28, {CT}")
        a("v_lshl_add_u32 v21, v1, 2, s28")
        a("s_mov_b32 exec_hi, 0")
        a("ds_write_b32 v21, v20")
        a("s_mov_b64 exec, -1")
        self.lds_signal(F_CT)
        a("s_cmp_lg_u32 s3, 1"); a("s_cbranch_scc1 L_end")
        self.lds_wait(F_CT, 4)
        a("v_and_b32 v21, 31, v1"); a("v_lshlrev_b32 v21, 2, v21"); a(f"v_add_u32 v21, {CT}, v21")
        for k in range(4): a(f"ds_read_b32 v{24+k}, v21 offset:{128*k}")
        a("s_waitcnt lgkmcnt(0)")
        for k in range(4):
            a(f"v_lshlrev_b32 v{28+k}, 16, v{24+k}"); a(f"v_and_b32 v{24+k}, 0xffff0000, v{24+k}")
        a("v_add_f32 v28, v28, v29"); a("v_add_f32 v30, v30, v31"); a("v_add_f32 v24, v24, v25"); a("v_add_f32 v26, v26, v27")
        a("v_add_f32 v28, v28, v30"); a("v_add_f32 v24, v24, v26")
        a("v_cvt_pk_bf16_f32 v24, v28, v24")
        a(f"ds_write_b32 v21, v24 offset:{CT2-CT}")
        a("v_lshrrev_b32 v22, 4, v1"); a("v_lshlrev_b32 v22, 5, v22"); a(f"v_add_u32 v22, {CT2}, v22")
        a("s_waitcnt lgkmcnt(0)")
        a("ds_read_b128 v[24:27], v22"); a("ds_read_b128 v[28:31], v22 offset:16")
        a("s_waitcnt lgkmcnt(0)")
        self.gemv16(24)
        self.stamp(10)
        self.lds_wait(F_SD, 4, sleep=2)
        a("s_and_b32 s34, s100, 0x3c"); a("s_add_u32 s34, s34, s101"); a("s_and_b32 s35, s100, 3")
        self.publish_out(1, 96, "s34", "s35")
        self.stamp(11)
        a("s_cmp_lt_u32 s2, 128"); a("s_cbranch_scc1 C_1end")
        a("s_cmp_ge_u32 s2, 240"); a("s_cbranch_scc1 C_1end")
        a("s_sub_u32 s34, s2, 128")
        self.reduce_out(1, "s34")
        a.label("C_1end")
        self.stamp(12)
        self.dump_stamps(2)
        a("s_endpgm")

    def gemv16(self, src):
        a = self.a
        for t in range(16):
            for w in range(4):
                a(f"v_perm_b32 v{32+4*t+w}, v{src+t//2}, v{src+t//2}, v{(8 if t & 1 else 4)+w}")
        a("s_waitcnt vmcnt(0)")
        for t in range(16):
            a(f"v_mfma_f32_16x16x32_bf16 v[96:99], {vr(192+4*t)}, {vr(32+4*t)}, {'0' if t == 0 else 'v[96:99]'}")

    def tail(self):
        a = self.a
        a.label("C_T0")
        a("v_lshlrev_b32 v100, 4, v1"); a(f"v_add_u32 v101, {MRG}, v100")
        a("v_and_b32 v102, 15, v1"); a("v_lshlrev_b32 v102, 3, v102"); a(f"v_add_u32 v102, {MRGS}, v102")
        a("v_bfe_u32 v103, v1, 3, 1"); a("v_lshlrev_b32 v103, 14, v103")
        a("v_lshrrev_b32 v20, 5, v1"); a("v_lshl_add_u32 v103, v20, 12, v103")
        a("v_bfe_u32 v20, v1, 4, 1"); a("v_lshl_add_u32 v103, v20, 6, v103")
        a("v_and_b32 v20, 7, v1"); a("v_lshl_add_u32 v103, v20, 3, v103")
        a("v_add_u32 v104, 0x2000, v103")
        a("s_lshr_b32 s34, s2, 6"); a("s_lshl_b32 s34, s34, 3"); a("s_and_b32 s28, s2, 7"); a("s_add_u32 s36, s34, s28")
        a("s_bfe_u32 s37, s2, 0x30003")
        a("s_lshl_b32 s38, s37, 15"); a("s_lshl_b32 s28, s36, 7"); a("s_add_u32 s38, s38, s28"); a(f"s_add_u32 s38, s38, {OREC}")
        a("s_lshl_b32 s39, s37, 9"); a("s_lshl_b32 s28, s36, 3"); a("s_add_u32 s39, s39, s28"); a(f"s_add_u32 s39, s39, {OST}")
        a("v_lshlrev_b32 v105, 5, v1")
        a("s_lshl_b32 s40, s100, 12"); a(f"s_add_u32 s40, s40, {OREC}")
        a("s_lshr_b32 s41, s100, 2"); a("s_lshl_b32 s41, s41, 8"); a(f"s_add_u32 s41, s41, {OST}")
        a("v_and_b32 v106, 31, v1"); a("v_lshlrev_b32 v106, 3, v106")
        a("v_lshrrev_b32 v107, 3, v1"); a("v_lshlrev_b32 v107, 2, v107")
        a("v_lshrrev_b32 v108, 4, v1"); a("v_lshlrev_b32 v108, 2, v108")
        self.lds_wait(F_SD, 4, sleep=1)
        self.stamp(11)
        for w in range(4):
            a(f"ds_read_b64 v[{64+2*w}:{65+2*w}], v102 offset:{128*w}")
        for w in range(4):
            a(f"ds_read_b128 {vr(32+8*w)}, v101 offset:{2048*w}")
            a(f"ds_read_b128 {vr(36+8*w)}, v101 offset:{2048*w+1024}")
        a("s_waitcnt lgkmcnt(8)")
        a("v_max3_f32 v72, v64, v66, v68"); a("v_max_f32 v72, v72, v70"); a("v_and_b32 v72, v19, v72")
        for w in range(4): a(f"v_sub_f32 v{64+2*w}, v{64+2*w}, v72")
        for w in range(4): a(f"v_exp_f32 v{64+2*w}, v{64+2*w}")
        a("v_mul_f32 v73, v64, v65")
        for w in range(1, 4): a(f"v_fmac_f32 v73, v{64+2*w}, v{65+2*w}")
        a("v_or_b32 v72, s17, v72"); a("v_and_or_b32 v73, v73, v19, s17")
        a("s_mov_b64 exec, 0x101")
        a("buffer_store_dwordx2 v[72:73], v105, s[12:15], s39 offen sc1")
        a("s_mov_b64 exec, -1")
        a("s_waitcnt lgkmcnt(0)")
        for i in range(8): a(f"v_mul_f32 v{32+i}, v64, v{32+i}")
        for w in range(1, 4):
            for i in range(8): a(f"v_fmac_f32 v{32+i}, v{64+2*w}, v{32+8*w+i}")
        for k in range(4): self.tagpack(76+k, 32+2*k, 33+2*k)
        a("buffer_store_dwordx2 v[76:77], v103, s[12:15], s38 offen sc1")
        a("buffer_store_dwordx2 v[78:79], v104, s[12:15], s38 offen sc1")
        self.stamp(12)
        L = a.newlabel("G6"); E = a.newlabel("G6E")
        a(f"s_mov_b32 s33, {SPIN//8}")
        a.label(L)
        a("buffer_load_dwordx2 v[64:65], v106, s[12:15], s41 offen sc1")
        for i in range(4):
            a(f"buffer_load_dwordx4 {vr(112+4*i)}, v100, s[12:15], s40 offen offset:{1024*i} sc1")
        a("s_sub_u32 s33, s33, 1")
        a(f"s_cbranch_scc1 {E}")
        a("s_waitcnt vmcnt(0)")
        self.vcheck(list(range(112, 128)), "0x00010001", "s18")
        self.vcheck([64, 65], "0xff", "s17", first=False)
        a("v_cmp_ne_u32 vcc, 0, v14")
        a(f"s_cbranch_vccnz {L}")
        a.label(E)
        a("s_waitcnt vmcnt(0)")
        self.stamp(13)
        a("v_and_b32 v64, v19, v64"); a("v_and_b32 v65, v19, v65")
        a("v_mov_b32 v66, v64")
        self.allred16("v_max_f32", 66); self.xred("v_max_f32", 66, 67, 16)
        a("v_sub_f32 v64, v64, v66"); a("v_exp_f32 v64, v64")
        a("v_mul_f32 v65, v64, v65")
        self.allred16("v_add_f32", 65); self.xred("v_add_f32", 65, 67, 16)
        a("v_rcp_f32 v65, v65")
        a("v_mul_f32 v64, v64, v65")
        a("v_cvt_pk_bf16_f32 v66, v64, v64"); a("v_lshlrev_b32 v66, 16, v66"); a("v_sub_f32 v66, v64, v66")
        a("v_cvt_pk_bf16_f32 v64, v64, v66")
        for i in range(4):
            a(f"ds_bpermute_b32 v{68+i}, v107, v64 offset:{32*i}")
        a("s_waitcnt lgkmcnt(0)")
        for i in range(4):
            for w in range(4):
                a(f"v_perm_b32 v{128+4*i+w}, v{68+i}, v{68+i}, v{4+w}")
                a(f"v_perm_b32 v{144+4*i+w}, v{68+i}, v{68+i}, v{8+w}")
        for i in range(4):
            a(f"v_mfma_f32_16x16x32_bf16 v[72:75], {vr(112+4*i)}, {vr(128+4*i)}, {'0' if i == 0 else 'v[72:75]'}")
            a(f"v_mfma_f32_16x16x32_bf16 v[72:75], {vr(112+4*i)}, {vr(144+4*i)}, v[72:75]")
        for r in range(4): a(f"v_mov_b32 v{76+r}, v{72+r}")
        for r in range(4): a(f"v_permlane32_swap_b32 v{72+r}, v{76+r}")
        for r in range(4): a(f"v_add_f32 v{72+r}, v{76+r}, v{72+r} row_ror:8 row_mask:0xf bank_mask:0xf")
        a("v_cvt_pk_bf16_f32 v72, v72, v73"); a("v_cvt_pk_bf16_f32 v73, v74, v75")
        for k in range(8):
            q = k >> 1
            a(f"ds_bpermute_b32 v{24+k}, v108, v{72+(k & 1)} offset:{(16*(q >> 1) + 4*(q & 1))*4}")
        a("s_waitcnt lgkmcnt(0)")
        self.gemv16(24)
        self.publish_out(0, 96, "s100", "s101")
        self.stamp(14)
        a("s_cmp_ge_u32 s2, 112"); a("s_cbranch_scc1 C_0end")
        self.reduce_out(0, "s2")
        a("s_cmp_lg_u32 s2, 0"); a("s_cbranch_scc1 C_0end")
        a("v_mov_b32 v20, s16"); a("v_mov_b32 v21, 0")
        a("s_mov_b64 exec, 1")
        a("buffer_store_dword v20, v21, s[12:15], 0 offen sc1")
        a("s_mov_b64 exec, -1")
        a.label("C_0end")
        self.stamp(15)
        self.dump_stamps(1)
        a("s_endpgm")

    def swave(self):
        a = self.a; nt = self.nt
        a("v_mov_b32 v13, 0")
        a("v_lshl_add_u32 v14, v1, 2, v2")
        a("s_mov_b64 exec, 0xffff")
        a("ds_write_b32 v14, v13")
        a("s_mov_b64 exec, -1")
        a("s_mov_b64 s[20:21], s[38:39]")
        a("s_mov_b64 s[22:23], s[40:41]")
        a("s_mov_b64 s[24:25], s[48:49]")
        self.consts()
        a("v_and_b32 v23, 3, v1"); a("v_lshlrev_b32 v23, 2, v23"); a("v_bfe_u32 v24, v1, 2, 2"); a("v_add_u32 v23, v23, v24")
        a("v_lshlrev_b32 v23, 9, v23"); a("v_lshrrev_b32 v24, 4, v1"); a("v_lshl_add_u32 v20, v24, 4, v23")
        a("v_lshlrev_b32 v21, 9, v24"); a("v_and_b32 v23, 15, v1"); a("v_lshl_add_u32 v21, v23, 4, v21")
        a("v_add_u32 v22, 0x1000, v21")
        a("v_lshlrev_b32 v18, 4, v1")
        a("s_lshr_b32 s26, s2, 6"); a("s_lshl_b32 s26, s26, 3"); a("s_and_b32 s28, s2, 7"); a("s_add_u32 s26, s26, s28")
        a("s_bfe_u32 s27, s2, 0x30003"); a("s_lshl_b32 s27, s27, 22")
        a(f"s_mov_b32 s36, {CEXP:#x}")
        a("s_waitcnt lgkmcnt(0)")
        a("s_barrier")
        a("s_cmp_lt_u32 s2, 192"); a("s_cbranch_scc1 S_A")
        self.srd(4, 24, 16 << 20)
        a("s_sub_u32 s28, s2, 192"); a("s_lshl_b32 s28, s28, 18"); a("s_lshl_b32 s29, s3, 15"); a("s_add_u32 s28, s28, s29")
        DB = self.DB
        n = 0
        for k in range(16):
            sw = (((k & 7) << 1) | (k >> 3)) * 16
            a(f"v_xor_b32 v23, {sw}, v18")
            a(f"s_add_u32 m0, s29, {k*2048}")
            for half in range(2):
                if n >= DB: a(f"s_waitcnt vmcnt({DB-1})")
                a(f"buffer_load_dwordx4 v23, s[4:7], s28 offen offset:{1024*half} {nt} lds")
                n += 1
            a("s_add_u32 s28, s28, 2048")
        a(f"s_add_u32 s28, s28, {64*2048 - 16*2048}")
        for k in range(16):
            sw = (((k & 7) << 1) | (k >> 3)) * 16
            a(f"v_xor_b32 v23, {sw}, v18")
            for half in range(2):
                a(f"s_waitcnt vmcnt({DB-1})")
                if n == 32 + DB - 1:
                    self.lds_signal(F_T); self.stamp(1)
                a(f"buffer_load_dwordx4 {vr(128+8*k+4*half)}, v23, s[4:7], s28 offen offset:{1024*half} {nt}")
                n += 1
            a("s_add_u32 s28, s28, 2048")
        a("v_add_u32 v23, s29, v18")
        a("s_waitcnt vmcnt(0)")
        self.stamp(2)
        self.lds_wait(F_P1, 8, sleep=1)
        for i in range(32):
            a(f"ds_write_b128 v23, {vr(128+4*i)} offset:{1024*i}")
        self.lds_signal(F_T)
        self.stamp(3)
        a("s_add_u32 s26, s26, 96")
        self.kv(1, "B")
        a("s_branch S_fin")
        a.label("S_A")
        a("s_mul_i32 s26, s26, 5")
        self.kv(5, "A")
        a.label("S_fin")
        a.settle()
        self.xred("v_add_f32", 27, 24, 16); self.xred("v_add_f32", 27, 24, 32)
        a("s_lshl_b32 s28, s3, 11"); a(f"s_add_u32 s28, s28, {MRG}"); a("v_add_u32 v23, s28, v18")
        a("ds_write_b128 v23, v[64:67]"); a("ds_write_b128 v23, v[68:71] offset:1024")
        a("s_lshl_b32 s28, s3, 7"); a(f"s_add_u32 s28, s28, {MRGS}"); a("v_lshl_add_u32 v23, v1, 3, s28")
        a("s_mov_b64 exec, 0xffff")
        a("ds_write_b64 v23, v[26:27]")
        a("s_mov_b64 exec, -1")
        self.lds_signal(F_SD)
        self.stamp(15)
        a("s_cmp_lg_u32 s3, 0"); a("s_cbranch_scc1 L_end")
        self.dump_stamps(0)

    def kv(self, NU, tagn):
        a = self.a; nt = self.nt; D = self.D
        a("s_add_u32 s4, s20, s27"); a("s_addc_u32 s5, s21, 0"); a(f"s_mov_b32 s6, {4<<20}"); a("s_mov_b32 s7, 0x00020000")
        a("s_add_u32 s8, s22, s27"); a("s_addc_u32 s9, s23, 0"); a(f"s_mov_b32 s10, {4<<20}"); a("s_mov_b32 s11, 0x00020000")
        a("s_lshl_b32 s30, s26, 15"); a("s_lshl_b32 s28, s3, 13"); a("s_add_u32 s30, s30, s28")
        N = 16 * NU; R = min(32, N)
        st = {"n": 0}
        def issue():
            i = st["n"]
            if i >= N: return
            u, k = divmod(i, 16)
            if k == 0 and u > 0: a("s_add_u32 s30, s30, 32768")
            if i >= D: a(f"s_waitcnt vmcnt({D-1})")
            dst = vr(128 + 4*(i % R))
            if k < 8:
                a(f"buffer_load_dwordx4 {dst}, v20, s[4:7], s30 offen offset:{64*k} {nt}")
            else:
                r, half = divmod(k - 8, 2)
                a(f"buffer_load_dwordx4 {dst}, v{21 + (r >> 1)}, s[8:11], s30 offen offset:{(r & 1)*2048 + half*256} {nt}")
            st["n"] += 1
        for _ in range(R): issue()
        self.stamp(4)
        self.lds_wait(F_QA, 1, sleep=1)
        self.stamp(5)
        a("v_bfe_u32 v23, v1, 3, 1"); a("v_lshlrev_b32 v23, 9, v23"); a("v_lshrrev_b32 v24, 4, v1"); a("v_lshl_add_u32 v23, v24, 4, v23")
        a(f"v_add_u32 v23, {QA}, v23")
        for t in range(8): a(f"ds_read_b128 {vr(32+4*t)}, v23 offset:{64*t}")
        a("s_waitcnt lgkmcnt(0)")
        M, Lr = 26, 27
        for i in range(N):
            u, k = divmod(i, 16)
            need = st["n"] - 1 - i
            if need <= D - 1: a(f"s_waitcnt vmcnt({need})")
            src = vr(128 + 4*(i % R))
            if k < 8:
                a(f"v_mfma_f32_16x16x32_bf16 v[72:75], {src}, {vr(32+4*k)}, {'0' if k == 0 else 'v[72:75]'}")
                issue()
                if k == 7:
                    if self.round_s:
                        a("v_cvt_pk_bf16_f32 v28, v72, v73"); a("v_cvt_pk_bf16_f32 v29, v74, v75")
                        a("v_lshlrev_b32 v72, 16, v28"); a("v_and_b32 v73, 0xffff0000, v28")
                        a("v_lshlrev_b32 v74, 16, v29"); a("v_and_b32 v75, 0xffff0000, v29")
                    a("v_max3_f32 v28, v72, v73, v74"); a("v_max_f32 v28, v28, v75")
                    self.xred("v_max_f32", 28, 29, 16); self.xred("v_max_f32", 28, 29, 32)
                    a("v_mul_f32 v28, s36, v28")
                    if u > 0:
                        a(f"v_max_f32 v28, v28, v{M}")
                        a(f"v_sub_f32 v30, v{M}, v28"); a("v_exp_f32 v30, v30")
                    a(f"v_mov_b32 v{M}, v28")
                    for r in range(4): a(f"v_fma_f32 v{72+r}, v{72+r}, s36, -v{M}")
                    for r in range(4): a(f"v_exp_f32 v{72+r}, v{72+r}")
                    if u > 0:
                        for r in range(8): a(f"v_mul_f32 v{64+r}, v{64+r}, v30")
                        a(f"v_fma_f32 v{Lr}, v{Lr}, v30, v72")
                    else:
                        a(f"v_mov_b32 v{Lr}, v72")
                    for r in range(1, 4): a(f"v_add_f32 v{Lr}, v{Lr}, v{72+r}")
                    a("v_cvt_pk_bf16_f32 v28, v72, v73"); a("v_cvt_pk_bf16_f32 v29, v74, v75")
                    for r in range(4):
                        for w in range(4):
                            a(f"v_perm_b32 v{76+4*r+w}, v{28+r//2}, v{28+r//2}, v{(8 if r & 1 else 4)+w}")
            else:
                r, half = divmod(k - 8, 2)
                c = '0' if (u == 0 and r == 0) else vr(64+4*half)
                a(f"v_mfma_f32_16x16x32_bf16 {vr(64+4*half)}, {src}, {vr(76+4*r)}, {c}")
                issue()

if __name__ == "__main__":
    import argparse
    ap = argparse.ArgumentParser()
    ap.add_argument("out"); ap.add_argument("--nt", default="nt"); ap.add_argument("--D", type=int, default=8); ap.add_argument("--DB", type=int, default=12)
    ap.add_argument("--nostamps", action="store_true")
    x = ap.parse_args()
    g = G(nt=x.nt, D=x.D, DB=x.DB, stamps=not x.nostamps)
    open(x.out, "w").write(g.build())
```

```python
import sys
from asmlib import Asm, vr, sr
NAME = "concat_heads__gqa_block_cached__compressed_kv_cla__decode"

WS_STAMP = 0x1000
QREC = 0x20000; QABS = 0x40000; HQ = 0x48000; HL = 0x4A000; LST = 0x4C000
CTX = 0x50000; OST = 0x60000; OREC = 0x70000; OUTP = 0xB0000; LREC = 0x100000
WS_BYTES = 0x300000
TILE = 0
SC = 131072
RED8 = SC
RED2 = SC + 4096
QA = SC + 5120
SSCR = SC + 6144
MRG = SC + 22528
MRGS = SC + 30720
CT = SC + 31232
CT2 = SC + 31744
FLG = SC + 32000
F_C, F_QA, F_T, F_P1, F_SD, F_R, F_CT = [FLG + 4*i for i in range(7)]
LDS_BYTES = 163840
CEXP = 0x3DB8AA3B
SPIN = 200000

class G:
    def __init__(self, nt="nt", D=8, DB=12, stamps=True, round_s=True, diag=None):
        self.diag = diag
        self.a = Asm(); self.nt = nt; self.D = D; self.DB = DB; self.stamps = stamps; self.round_s = round_s
        self.ccount = 0
    def stamp(self, i):
        if not self.stamps: return
        a = self.a
        a("s_memrealtime vcc")
        a("s_waitcnt lgkmcnt(0)")
        a(f"v_writelane_b32 v12, vcc_lo, {i}")
    def srd(self, d, p, nbytes, off=None):
        a = self.a
        if off is None:
            a(f"s_mov_b32 s{d}, s{p}"); a(f"s_mov_b32 s{d+1}, s{p+1}")
        else:
            a(f"s_add_u32 s{d}, s{p}, {off}"); a(f"s_addc_u32 s{d+1}, s{p+1}, 0")
        a(f"s_mov_b32 s{d+2}, {nbytes}"); a(f"s_mov_b32 s{d+3}, 0x00020000")
    def lds_signal(self, addr):
        a = self.a
        a("s_waitcnt lgkmcnt(0)")
        a("s_mov_b64 exec, 1")
        a(f"ds_add_u32 v2, v3 offset:{addr - FLG}")
        a("s_mov_b64 exec, -1")
    def lds_wait(self, addr, target, sleep=0):
        a = self.a
        L = a.newlabel("LW"); E = a.newlabel("LE")
        a(f"s_mov_b32 s33, {SPIN}")
        a.label(L)
        a(f"ds_read_b32 v13, v2 offset:{addr - FLG}")
        a("s_sub_u32 s33, s33, 1")
        a(f"s_cbranch_scc1 {E}")
        a("s_waitcnt lgkmcnt(0)")
        a("v_readfirstlane_b32 s32, v13")
        a(f"s_cmp_ge_u32 s32, {target}")
        if sleep:
            a(f"s_cbranch_scc1 {E}")
            a(f"s_sleep {sleep}")
            a(f"s_branch {L}")
        else:
            a(f"s_cbranch_scc0 {L}")
        a.label(E)
        a("s_waitcnt lgkmcnt(0)")
    def csync(self):
        self.ccount += 4
        self.lds_signal(F_C)
        self.lds_wait(F_C, self.ccount)
    def spoll(self, nx16, soff, imm, mask, want):
        a = self.a
        L = a.newlabel("SP"); E = a.newlabel("SE")
        a(f"s_mov_b32 s33, {SPIN//8}")
        a.label(L)
        for i in range(nx16):
            a(f"s_load_dwordx16 s[{36+16*i}:{51+16*i}], s[12:13], {soff} offset:{imm+64*i} glc")
        a("s_sub_u32 s33, s33, 1")
        a(f"s_cbranch_scc1 {E}")
        a("s_waitcnt lgkmcnt(0)")
        n = 8 * nx16
        a("s_and_b64 s[28:29], s[36:37], s[38:39]")
        a("s_or_b64 s[30:31], s[36:37], s[38:39]")
        for i in range(2, n):
            a(f"s_and_b64 s[28:29], s[28:29], s[{36+2*i}:{37+2*i}]")
            a(f"s_or_b64 s[30:31], s[30:31], s[{36+2*i}:{37+2*i}]")
        a("s_and_b32 s28, s28, s29")
        a("s_or_b32 s30, s30, s31")
        a(f"s_xor_b32 s28, s28, {want}")
        a(f"s_xor_b32 s30, s30, {want}")
        a("s_or_b32 s28, s28, s30")
        a(f"s_and_b32 s28, s28, {mask}")
        a(f"s_cbranch_scc1 {L}")
        a.label(E)
        a("s_waitcnt lgkmcnt(0)")
    def vcheck(self, regs, mask, want, acc=14, first=True):
        a = self.a
        tmp = acc + 1
        a(f"v_xor_b32 v{tmp}, {want}, v{regs[0]}")
        for r in regs[1:]:
            a(f"v_bitop3_b32 v{tmp}, v{r}, {want}, v{tmp} bitop3:0xbe")
        if first:
            a(f"v_and_b32 v{acc}, {mask}, v{tmp}")
        else:
            a(f"v_and_b32 v{tmp}, {mask}, v{tmp}")
            a(f"v_or_b32 v{acc}, v{acc}, v{tmp}")
    def allred16(self, op, v):
        for n in (8, 4, 2, 1):
            self.a(f"{op} v{v}, v{v}, v{v} row_ror:{n} row_mask:0xf bank_mask:0xf")
    def xred(self, op, v, t, which):
        a = self.a
        a(f"v_mov_b32 v{t}, v{v}")
        a(f"v_permlane{which}_swap_b32 v{v}, v{t}")
        a(f"{op} v{v}, v{v}, v{t}")
    def tagpack(self, d, x0, x1, both=True):
        a = self.a
        a(f"v_add_u32 v{x0}, s19, v{x0}")
        if both:
            a(f"v_add_u32 v{x1}, s19, v{x1}")
            a(f"v_perm_b32 v{d}, v{x1}, v{x0}, v16")
            a(f"v_and_or_b32 v{d}, v{d}, v17, s18")
        else:
            raise NotImplementedError
    def red8(self, dst):
        a = self.a
        for cw in range(4):
            for rho in range(2):
                a(f"ds_read_b32 v{20+2*cw+rho}, v18 offset:{cw*1024 + rho*640}")
        a("s_waitcnt lgkmcnt(0)")
        a("v_add_f32 v20, v20, v21"); a("v_add_f32 v22, v22, v23"); a("v_add_f32 v24, v24, v25"); a("v_add_f32 v26, v26, v27")
        a("v_add_f32 v20, v20, v22"); a("v_add_f32 v24, v24, v26")
        a(f"v_add_f32 v{dst}, v20, v24")
    def w16_loads(self, ptr, rowfn, lanerows, s_rg, s_cg):
        a = self.a
        self.srd(4, ptr, 4096*896)
        a("v_lshrrev_b32 v20, 4, v1")
        a(f"v_mul_u32_u24 v20, {lanerows*896}, v20")
        a("v_and_b32 v21, 15, v1")
        a("v_lshl_add_u32 v20, v21, 4, v20")
        a(f"s_cmp_eq_u32 {s_cg}, 3")
        a("s_cselect_b32 s28, 8, 16")
        a("v_cmp_le_u32 vcc, s28, v21")
        a("v_mov_b32 v21, 0x7ff00000")
        a("v_cndmask_b32 v20, v20, v21, vcc")
        a(f"s_mul_i32 s28, {s_rg}, {64*896}")
        a(f"s_lshl_b32 s29, {s_cg}, 8")
        a("s_add_u32 s28, s28, s29")
        for t in range(16):
            a(f"s_add_u32 s29, s28, {rowfn(t)*896}")
            a(f"buffer_load_dwordx4 {vr(192+4*t)}, v20, s[4:7], s29 offen {self.nt}")
    def publish_out(self, P, acc, s_rg, s_cg):
        a = self.a
        for r in range(4):
            a(f"v_and_or_b32 v{20+r}, v{acc+r}, v19, s17")
        a("v_lshrrev_b32 v24, 4, v1"); a("v_lshlrev_b32 v24, 7, v24")
        a("v_and_b32 v25, 7, v1"); a("v_lshl_add_u32 v24, v25, 4, v24")
        a(f"s_lshl_b32 s28, {s_rg}, 11"); a(f"s_lshl_b32 s29, {s_cg}, 9"); a("s_add_u32 s28, s28, s29")
        a(f"s_add_u32 s28, s28, {OUTP + P*131072}")
        a("s_mov_b32 exec_lo, 0x00ff00ff")
        a(f"s_cmp_eq_u32 {s_cg}, 3")
        a("s_cselect_b32 exec_hi, 0, 0x00ff00ff")
        a(f"buffer_store_dwordx4 v[20:23], v24, s[12:15], s28 offen sc1")
        a("s_mov_b64 exec, -1")
    def reduce_out(self, P, s_n):
        a = self.a
        L = a.newlabel("RO"); E = a.newlabel("RE")
        a("v_lshlrev_b32 v24, 11, v1")
        a(f"s_lshl_b32 s28, {s_n}, 4"); a(f"s_add_u32 s28, s28, {OUTP + P*131072}")
        a(f"s_mov_b32 s33, {SPIN//8}")
        a.label(L)
        a("buffer_load_dwordx4 v[20:23], v24, s[12:15], s28 offen sc1")
        a("s_sub_u32 s33, s33, 1")
        a(f"s_cbranch_scc1 {E}")
        a("s_waitcnt vmcnt(0)")
        self.vcheck([20, 21, 22, 23], "0xff", "s17")
        a("v_cmp_ne_u32 vcc, 0, v14")
        a(f"s_cbranch_vccnz {L}")
        a.label(E)
        a("s_waitcnt vmcnt(0)")
        for r in range(4): a(f"v_and_b32 v{20+r}, v19, v{20+r}")
        a("v_permlane32_swap_b32 v20, v21"); a("v_permlane32_swap_b32 v22, v23")
        a("v_add_f32 v20, v20, v21"); a("v_add_f32 v22, v22, v23")
        a("v_permlane16_swap_b32 v20, v22")
        a("v_add_f32 v20, v20, v22")
        self.allred16("v_add_f32", 20)
        a("v_cvt_pk_bf16_f32 v20, v20, v20")
        a("v_lshrrev_b32 v21, 4, v1")
        a("v_lshlrev_b32 v22, 1, v21"); a("v_and_b32 v22, 2, v22"); a("v_lshrrev_b32 v21, 1, v21"); a("v_or_b32 v21, v21, v22")
        a("v_lshlrev_b32 v21, 4, v21")
        a(f"s_lshr_b32 s28, {s_n}, 3"); a("s_lshl_b32 s28, s28, 5"); a(f"s_and_b32 s29, {s_n}, 7"); a("s_add_u32 s28, s28, s29")
        a("s_lshl_b32 s28, s28, 1"); a(f"s_add_u32 s28, s28, {(0 if P == 0 else 448)*2}")
        self.srd(8, 26, 1792)
        a("s_mov_b32 exec_lo, 0x00010001"); a("s_mov_b32 exec_hi, 0x00010001")
        a("buffer_store_short v20, v21, s[8:11], s28 offen")
        a("s_mov_b64 exec, -1")
    def dump_stamps(self, slot):
        if not self.stamps: return
        a = self.a
        a("v_lshlrev_b32 v20, 2, v1")
        a("s_lshl_b32 s28, s2, 8"); a(f"s_add_u32 s28, s28, {WS_STAMP + slot*64}")
        a("s_mov_b64 exec, 0xffff")
        a("buffer_store_dword v12, v20, s[12:15], s28 offen")
        a("s_mov_b64 exec, -1")

    def build(self):
        a = self.a
        a.raw(f"; @launch grid=(256,1,1) block=(512,1,1) lds={LDS_BYTES}")
        a.raw('.amdgcn_target "amdgcn-amd-amdhsa--gfx950"')
        a.raw(".text"); a.raw(f".globl {NAME}_kernel"); a.raw(".p2align 8"); a.raw(f".type {NAME}_kernel,@function"); a.raw(f"{NAME}_kernel:")
        a("s_cmp_ge_u32 s2, 256"); a("s_cbranch_scc1 L_end")
        a("s_load_dwordx16 s[36:51], s[0:1], 0")
        a("s_load_dwordx8 s[52:59], s[0:1], 64")
        a("s_load_dwordx4 s[60:63], s[0:1], 96")
        a("v_and_b32 v1, 63, v0")
        a("v_lshrrev_b32 v13, 6, v0")
        a("v_mov_b32 v12, 0")
        a("v_readfirstlane_b32 s3, v13")
        a(f"v_mov_b32 v2, {FLG}")
        a("v_mov_b32 v3, 1")
        a("s_waitcnt lgkmcnt(0)")
        self.srd(12, 62, WS_BYTES)
        self.stamp(0)
        a("s_cmp_lt_u32 s3, 4"); a("s_cbranch_scc1 L_S")
        self.cwave()
        a.label("L_S")
        self.swave()
        a.label("L_end"); a("s_endpgm")
        a.raw('.section .rodata,"a"'); a.raw(".p2align 6"); a.raw(f".amdhsa_kernel {NAME}_kernel")
        a.raw("  .amdhsa_next_free_vgpr 256"); a.raw("  .amdhsa_next_free_sgpr 102"); a.raw("  .amdhsa_accum_offset 256")
        a.raw("  .amdhsa_group_segment_fixed_size 0"); a.raw("  .amdhsa_kernarg_size 112"); a.raw("  .amdhsa_user_sgpr_count 2")
        a.raw("  .amdhsa_user_sgpr_kernarg_segment_ptr 1"); a.raw("  .amdhsa_system_sgpr_workgroup_id_x 1"); a.raw(".end_amdhsa_kernel")
        return a.text()

    def consts(self):
        a = self.a
        a("v_and_b32 v13, 1, v1")
        a("v_cmp_eq_u32 vcc, 1, v13")
        a("v_mov_b32 v14, 0x0c0c0100"); a("v_mov_b32 v15, 0x01000c0c")
        a("v_cndmask_b32 v14, v14, v15, vcc")
        a("v_mov_b32 v20, 0x0c0c0302"); a("v_mov_b32 v15, 0x03020c0c")
        a("v_cndmask_b32 v15, v20, v15, vcc")
        a("v_bfe_u32 v13, v1, 1, 2")
        a("v_mov_b32 v20, 0x0c0c0c0c")
        for w in range(4):
            a(f"v_cmp_eq_u32 vcc, {w}, v13")
            a(f"v_cndmask_b32 v{4+w}, v20, v14, vcc")
            a(f"v_cndmask_b32 v{8+w}, v20, v15, vcc")
        a("v_mov_b32 v16, 0x07060302")
        a("v_mov_b32 v17, 0xfffefffe")
        a("v_mov_b32 v19, 0xffffff00")
    def tags(self):
        a = self.a
        a("s_waitcnt lgkmcnt(0)")
        a("s_add_u32 s16, s16, 0x01010101")
        a("s_and_b32 s17, s16, 0xff")
        a("s_and_b32 s18, s16, 1")
        a("s_cselect_b32 s18, 0x00010001, 0")
        a("s_cselect_b32 s19, 0, 0x10000")

    def cwave(self):
        a = self.a; nt = self.nt
        a("s_setprio 3")
        a("s_load_dword s16, s[12:13], 0")
        a("s_sub_u32 s3, s3, 4")
        a("s_mov_b64 s[20:21], s[54:55]")
        a("s_mov_b64 s[22:23], s[56:57]")
        a("s_mov_b64 s[24:25], s[44:45]")
        a("s_mov_b64 s[26:27], s[58:59]")
        a("s_cmp_ge_u32 s2, 128"); a("s_cbranch_scc1 C_noP1a")
        a("s_cmp_lt_u32 s2, 64")
        a("s_cselect_b32 s4, s50, s42"); a("s_cselect_b32 s5, s51, s43")
        a("s_cselect_b32 s8, s46, s36"); a("s_cselect_b32 s9, s47, s37")
        a(f"s_mov_b32 s6, {448*8192}"); a("s_mov_b32 s7, 0x00020000")
        a("s_mov_b32 s10, 896"); a("s_mov_b32 s11, 0x00020000")
        a("v_lshrrev_b32 v20, 3, v1")
        a("v_mul_u32_u24 v21, 28, v20")
        a("s_mul_i32 s28, s3, 224")
        a("buffer_load_dwordx4 v[24:27], v21, s[8:11], s28 offen")
        a("buffer_load_dwordx3 v[28:30], v21, s[8:11], s28 offen offset:16")
        a(f"v_mul_u32_u24 v20, {14*8192}, v20")
        a("v_and_b32 v21, 7, v1")
        a("v_lshl_add_u32 v20, v21, 4, v20")
        a(f"s_mul_i32 s28, s3, {112*8192}")
        a("s_and_b32 s29, s2, 63"); a("s_lshl_b32 s29, s29, 7"); a("s_add_u32 s28, s28, s29")
        for t in range(14):
            a(f"buffer_load_dwordx4 {vr(192+4*t)}, v20, s[4:7], s28 offen {nt}")
            if t != 13: a("s_add_u32 s28, s28, 8192")
        a.label("C_noP1a")
        self.srd(4, 52, 8 << 20)
        a("v_and_b32 v20, 15, v1"); a("v_lshlrev_b32 v20, 13, v20")
        a("v_lshrrev_b32 v21, 4, v1"); a("v_lshl_add_u32 v20, v21, 4, v20")
        a("s_and_b32 s28, s2, 15"); a("s_lshl_b32 s28, s28, 19")
        a("s_lshr_b32 s29, s2, 4"); a("s_lshl_b32 s29, s29, 9"); a("s_add_u32 s28, s28, s29")
        a("s_lshl_b32 s29, s3, 7"); a("s_add_u32 s28, s28, s29")
        for rb in range(4):
            for t in range(2):
                a(f"buffer_load_dwordx4 {vr(128 + 8*rb + 4*t)}, v20, s[4:7], s28 offen offset:{64*t} {nt}")
            if rb != 3: a(f"s_add_u32 s28, s28, {16*8192}")
        a("s_barrier")
        self.consts()
        a("v_lshrrev_b32 v20, 5, v1"); a("v_lshlrev_b32 v20, 8, v20")
        a("v_and_b32 v21, 7, v1"); a("v_lshl_add_u32 v20, v21, 4, v20")
        a("v_bfe_u32 v21, v1, 3, 2"); a("v_lshl_add_u32 v20, v21, 2, v20")
        a(f"v_add_u32 v18, {RED8}, v20")
        self.tags()
        a("s_cmp_ge_u32 s2, 128"); a("s_cbranch_scc1 C_noP1b")
        a("s_waitcnt vmcnt(22)")
        for t in range(14):
            for w in range(4):
                a(f"v_perm_b32 v{32+4*t+w}, v{24+t//2}, v{24+t//2}, v{(8 if t & 1 else 4)+w}")
        for t in range(14):
            a(f"s_waitcnt vmcnt({8 + 13 - t})")
            a(f"v_mfma_f32_16x16x32_bf16 v[88:91], {vr(192+4*t)}, {vr(32+4*t)}, {'0' if t == 0 else 'v[88:91]'}")
        a("s_lshl_b32 s28, s3, 10"); a(f"s_add_u32 s28, s28, {RED8}")
        a("v_lshl_add_u32 v20, v1, 4, s28")
        a("ds_write_b128 v20, v[88:91]")
        self.lds_signal(F_R)
        a("s_cmp_lg_u32 s3, 0"); a("s_cbranch_scc1 C_noP1b")
        self.lds_wait(F_R, 4)
        self.red8(20)
        a("v_cvt_pk_bf16_f32 v20, v20, v20")
        a("s_and_b32 s28, s16, 0xffff")
        a("v_mov_b32 v21, 0xffff0000")
        a("v_and_or_b32 v20, v20, v21, s28")
        a("v_lshlrev_b32 v21, 2, v1")
        a("s_lshl_b32 s28, s2, 8"); a(f"s_add_u32 s28, s28, {QREC}")
        a("buffer_store_dword v20, v21, s[12:15], s28 offen sc1")
        a("s_cmp_ge_u32 s2, 64"); a("s_cbranch_scc1 C_noP1b")
        for rep in range(1, 4):
            a("s_add_u32 s28, s28, 0x8000")
            a("buffer_store_dword v20, v21, s[12:15], s28 offen sc1")
        a.label("C_noP1b")
        a.settle()
        self.stamp(1)
        a("s_lshr_b32 s34, s2, 4"); a("s_lshl_b32 s34, s34, 2"); a("s_add_u32 s34, s34, s3"); a("s_lshl_b32 s34, s34, 8")
        a("s_and_b32 s35, s2, 3"); a("s_lshl_b32 s35, s35, 15"); a("s_add_u32 s34, s34, s35")
        self.spoll(4, "s34", QREC, "0xffff", "s16")
        a("s_cmp_lg_u32 s3, 1"); a("s_cbranch_scc1 C_noQA0")
        self.qa_issue()
        a.label("C_noQA0")
        for i in range(32):
            a(f"s_pack_hh_b32_b16 s{36+i}, s{36+2*i}, s{37+2*i}")
        for g in range(4):
            lo = (0xffff << (16*g)) & 0xffffffff if g < 2 else 0
            hi = (0xffff << (16*(g-2))) & 0xffffffff if g >= 2 else 0
            a(f"s_mov_b32 exec_lo, {lo:#x}"); a(f"s_mov_b32 exec_hi, {hi:#x}")
            for t in range(2):
                for w in range(4):
                    a(f"v_mov_b32 v{32+4*t+w}, s{36+16*t+4*g+w}")
        a("s_mov_b64 exec, -1")
        self.stamp(2)
        a("s_cmp_eq_u32 s3, 1"); a("s_cbranch_scc1 C_w2")
        a("s_cmp_eq_u32 s3, 0"); a("s_cbranch_scc1 C_w4")
        a("s_waitcnt vmcnt(0)"); a("s_branch C_wd")
        a.label("C_w2"); a("s_waitcnt vmcnt(2)"); a("s_branch C_wd")
        a.label("C_w4")
        a("s_cmp_lt_u32 s2, 64"); a("s_cbranch_scc1 C_w4b")
        a("s_cmp_lt_u32 s2, 128"); a("s_cbranch_scc1 C_w1")
        a("s_waitcnt vmcnt(0)"); a("s_branch C_wd")
        a.label("C_w1"); a("s_waitcnt vmcnt(1)"); a("s_branch C_wd")
        a.label("C_w4b"); a("s_waitcnt vmcnt(4)")
        a.label("C_wd")
        for rb in range(4):
            for t in range(2):
                a(f"v_mfma_f32_16x16x32_bf16 {vr(40+4*rb)}, {vr(128+8*rb+4*t)}, {vr(32+4*t)}, {'0' if t == 0 else vr(40+4*rb)}")
        a("s_lshl_b32 s28, s3, 8"); a(f"s_add_u32 s28, s28, {RED2}")
        a("v_add_u32 v20, s28, v1")
        a("s_mov_b32 exec_lo, 0x00010001"); a("s_mov_b32 exec_hi, 0x00010001")
        for rb in range(4):
            a(f"ds_write_b128 v20, {vr(40+4*rb)} offset:{64*rb}")
        a("s_mov_b64 exec, -1")
        self.ccount += 4
        self.lds_signal(F_C)
        a("s_cmp_lg_u32 s3, 0"); a("s_cbranch_scc1 C_noP2pub")
        self.lds_wait(F_C, self.ccount)
        a("v_lshlrev_b32 v20, 3, v1"); a("v_and_b32 v20, 0xff, v20"); a(f"v_add_u32 v20, {RED2}, v20")
        for cw in range(4):
            a(f"ds_read_b64 v[{22+2*cw}:{23+2*cw}], v20 offset:{256*cw}")
        a("s_waitcnt lgkmcnt(0)")
        for k in range(2):
            a(f"v_add_f32 v{22+k}, v{22+k}, v{24+k}"); a(f"v_add_f32 v{26+k}, v{26+k}, v{28+k}"); a(f"v_add_f32 v{22+k}, v{22+k}, v{26+k}")
        a("v_cvt_pk_bf16_f32 v23, v23, v23")
        a("v_add_u32 v22, s19, v22")
        a("v_perm_b32 v22, v23, v22, v16")
        a("v_and_b32 v22, 0xfffffffe, v22")
        a("s_and_b32 s28, s18, 1")
        a("v_or_b32 v22, s28, v22")
        a("v_lshlrev_b32 v21, 2, v1")
        a("s_lshl_b32 s28, s2, 7"); a(f"s_add_u32 s28, s28, {QABS}")
        a("s_mov_b32 exec_hi, 0")
        a("buffer_store_dword v22, v21, s[12:15], s28 offen sc1")
        a("v_lshlrev_b32 v21, 10, v1"); a("v_mov_b32 v23, s16")
        a("s_bfe_u32 s28, s2, 0x20002"); a("s_lshl_b32 s28, s28, 8")
        a("s_lshr_b32 s29, s2, 4"); a("s_lshl_b32 s29, s29, 4"); a("s_add_u32 s28, s28, s29")
        a("s_and_b32 s29, s2, 3"); a("s_lshl_b32 s29, s29, 2"); a("s_add_u32 s28, s28, s29")
        a(f"s_add_u32 s28, s28, {HQ}")
        a("s_mov_b32 exec_lo, 0xff")
        a("buffer_store_dword v23, v21, s[12:15], s28 offen sc1")
        a("s_mov_b64 exec, -1")
        a.label("C_noP2pub")
        a.settle()
        self.stamp(3)
        a("s_cmp_lg_u32 s3, 1"); a("s_cbranch_scc1 C_noQA1")
        self.qa_finish()
        a.label("C_noQA1")
        a.settle()
        a("s_lshr_b32 s100, s2, 5"); a("s_lshl_b32 s100, s100, 3"); a("s_and_b32 s28, s2, 7"); a("s_add_u32 s100, s100, s28")
        a("s_bfe_u32 s101, s2, 0x20003")
        self.srd(4, 20, 8 << 20)
        a("v_lshrrev_b32 v20, 3, v1"); a("v_lshlrev_b32 v20, 17, v20")
        a("v_and_b32 v21, 7, v1"); a("v_lshl_add_u32 v20, v21, 4, v20")
        a("s_and_b32 s28, s100, 3"); a("s_lshl_b32 s28, s28, 8")
        a("s_lshr_b32 s29, s3, 1"); a("s_lshl_b32 s29, s29, 7"); a("s_add_u32 s28, s28, s29")
        a("s_and_b32 s29, s3, 1"); a("s_lshl_b32 s29, s29, 3"); a("s_add_u32 s28, s28, s29")
        a("s_lshl_b32 s28, s28, 13")
        a("s_lshr_b32 s29, s100, 2"); a("s_lshl_b32 s29, s29, 9"); a("s_add_u32 s28, s28, s29")
        a("s_lshl_b32 s29, s101, 7"); a("s_add_u32 s28, s28, s29")
        for t in range(8):
            a(f"buffer_load_dwordx4 {vr(160+4*t)}, v20, s[4:7], s28 offen {nt}")
            if t != 7: a("s_add_u32 s28, s28, 8192")
        a("s_cmp_lt_u32 s2, 192"); a("s_cbranch_scc1 C_noB")
        self.battn()
        a.label("C_noB")
        a.settle()
        self.stamp(7)
        self.h4()
        self.tail()

    def qa_issue(self):
        a = self.a
        a("v_lshlrev_b32 v96, 4, v1")
        a("s_bfe_u32 s35, s2, 0x30003"); a("s_lshl_b32 s35, s35, 11"); a(f"s_add_u32 s35, s35, {QREC + 0x4000}")
        a("buffer_load_dwordx4 v[100:103], v96, s[12:15], s35 offen sc1")
        a("buffer_load_dwordx4 v[104:107], v96, s[12:15], s35 offen offset:1024 sc1")
    def qa_finish(self):
        a = self.a
        L = a.newlabel("QA"); E = a.newlabel("QE")
        a(f"s_mov_b32 s33, {SPIN//8}")
        a.label(L)
        a("s_waitcnt vmcnt(0)")
        self.vcheck(list(range(100, 108)), "0xffff", "s16")
        a("v_cmp_ne_u32 vcc, 0, v14")
        a(f"s_cbranch_vccz {E}")
        a("s_sub_u32 s33, s33, 1")
        a(f"s_cbranch_scc1 {E}")
        self.qa_issue()
        a(f"s_branch {L}")
        a.label(E)
        for i in range(4):
            a(f"v_perm_b32 v{20+i}, v{101+2*i}, v{100+2*i}, v16")
        a("v_lshlrev_b32 v24, 3, v1"); a(f"v_add_u32 v24, {QA}, v24")
        a("ds_write_b64 v24, v[20:21]")
        a("ds_write_b64 v24, v[22:23] offset:512")
        self.lds_signal(F_QA)

    def battn(self):
        a = self.a
        def swz(vd, vk, t):
            a(f"v_and_b32 v{vd}, 7, v{vk}"); a(f"v_lshlrev_b32 v{vd}, 1, v{vd}")
            a(f"v_lshrrev_b32 v{t}, 3, v{vk}"); a(f"v_or_b32 v{vd}, v{vd}, v{t}")
        a("s_lshl_b32 s34, s3, 9")
        a("v_and_b32 v20, 15, v1"); swz(21, 20, 22)
        a("v_lshrrev_b32 v22, 4, v1"); a("v_lshlrev_b32 v22, 1, v22")
        a("v_xor_b32 v21, v21, v22"); a("v_lshlrev_b32 v21, 4, v21")
        a("v_lshl_add_u32 v21, v20, 11, v21"); a("v_add_u32 v21, s34, v21")
        for v in range(4):
            x = (8*(v >> 1) + (v & 1)) * 16
            a(f"v_xor_b32 v{80+v}, {x}, v21")
            a(f"v_add_u32 v{84+v}, 0x10000, v{80+v}")
        a("v_lshrrev_b32 v20, 2, v1"); swz(21, 20, 22)
        a("v_bfe_u32 v22, v1, 1, 1"); a("v_xor_b32 v21, v21, v22"); a("v_lshlrev_b32 v21, 4, v21")
        a("v_and_b32 v22, 1, v1"); a("v_lshl_add_u32 v21, v22, 3, v21")
        a("v_lshl_add_u32 v21, v20, 11, v21"); a("v_add_u32 v21, s34, v21")
        for c in range(8):
            a(f"v_xor_b32 v{88+c}, {c*32}, v21")
            a(f"v_add_u32 v{96+c}, 0x10000, v{88+c}")
        a("v_and_b32 v30, 15, v1"); a("v_lshlrev_b32 v30, 11, v30"); a("v_lshrrev_b32 v31, 4, v1"); a("v_lshl_add_u32 v30, v31, 5, v30")
        a("s_and_b32 s34, s2, 7"); a("s_lshl_b32 s34, s34, 10"); a("s_lshl_b32 s35, s3, 8"); a("s_add_u32 s34, s34, s35")
        self.spoll(4, "s34", HQ, "-1", "s16")
        self.stamp(4)
        L = a.newlabel("QB"); E = a.newlabel("QBE")
        a("s_lshl_b32 s35, s3, 9"); a(f"s_add_u32 s35, s35, {QABS}")
        a(f"s_mov_b32 s33, {SPIN//8}")
        a.label(L)
        for t in range(8):
            a(f"buffer_load_dwordx4 {vr(32+4*t)}, v30, s[12:15], s35 offen offset:{128*(t>>1)+16*(t&1)} sc1")
        a("s_sub_u32 s33, s33, 1")
        a(f"s_cbranch_scc1 {E}")
        a("s_waitcnt vmcnt(0)")
        self.vcheck(list(range(32, 64)), "1", "s18")
        a("v_cmp_ne_u32 vcc, 0, v14")
        a(f"s_cbranch_vccnz {L}")
        a.label(E)
        a("s_waitcnt vmcnt(0)")
        self.stamp(5)
        a(f"s_mov_b32 s35, {CEXP:#x}")
        a("s_lshl_b32 s34, s3, 12"); a(f"s_add_u32 s34, s34, {SSCR}")
        a("v_lshl_add_u32 v28, v1, 4, s34")
        a("v_lshlrev_b32 v29, 4, v1"); a(f"v_add_u32 v29, {SSCR}, v29")
        M, Lr = 26, 27
        for ps in range(2):
            self.lds_wait(F_T, 4 * (ps + 1))
            seq = [(kb, t) for kb in range(4) for t in range(8)]
            NB = 12
            def rd(i):
                kb, t = seq[i]; u = t >> 1
                v = (u & 1) * 2 + (t & 1)
                base = (80 if kb < 2 else 84) + v
                a(f"ds_read_b128 {vr(104+4*(i % NB))}, v{base} offset:{(kb & 1)*32768 + (u >> 1)*256}")
            for i in range(NB): rd(i)
            for i in range(32):
                kb, t = seq[i]
                issued = min(32, i + NB)
                a(f"s_waitcnt lgkmcnt({min(15, issued - 1 - i)})")
                a(f"v_mfma_f32_16x16x32_bf16 {vr(64+4*kb)}, {vr(104+4*(i % NB))}, {vr(32+4*t)}, {'0' if t == 0 else vr(64+4*kb)}")
                if i + NB < 32: rd(i + NB)
            for kb in range(4):
                a(f"ds_write_b128 v28, {vr(64+4*kb)} offset:{1024*kb}")
            self.lds_signal(F_P1); self.lds_wait(F_P1, 8 * ps + 4)
            for w in range(4):
                for kb in range(4):
                    dst = (64 if w == 0 else 104 + 16*(w-1)) + 4*kb
                    a(f"ds_read_b128 {vr(dst)}, v29 offset:{4096*w + 1024*kb}")
            a("s_waitcnt lgkmcnt(0)")
            for i in range(16):
                a(f"v_add_f32 v{64+i}, v{64+i}, v{104+i}")
                a(f"v_add_f32 v{120+i}, v{120+i}, v{136+i}")
            for i in range(16):
                a(f"v_add_f32 v{64+i}, v{64+i}, v{120+i}")
            lseq = [(cb, s) for cb in range(16) for s in range(2)]
            def trd(i):
                cb, s = lseq[i]
                base = (88 if s == 0 else 96) + (cb & 7)
                b = 104 + 4*(i % NB)
                a(f"ds_read_b64_tr_b16 v[{b}:{b+1}], v{base} offset:{(cb >> 3)*256}")
                a(f"ds_read_b64_tr_b16 v[{b+2}:{b+3}], v{base} offset:{(cb >> 3)*256 + 32768}")
            NT = 7
            for i in range(NT): trd(i)
            a("v_max3_f32 v20, v64, v65, v66")
            for i in range(3, 15, 2):
                a(f"v_max3_f32 v20, v20, v{64+i}, v{65+i}")
            a("v_max_f32 v20, v20, v79")
            self.xred("v_max_f32", 20, 21, 16); self.xred("v_max_f32", 20, 21, 32)
            a("v_mul_f32 v20, s35, v20")
            a("v_and_b32 v20, v19, v20")
            if ps == 1:
                a(f"v_max_f32 v20, v20, v{M}")
                a(f"v_sub_f32 v22, v{M}, v20"); a("v_exp_f32 v22, v22")
            a(f"v_mov_b32 v{M}, v20")
            for i in range(16):
                a(f"v_fma_f32 v{64+i}, v{64+i}, s35, -v{M}")
            for i in range(16):
                a(f"v_exp_f32 v{64+i}, v{64+i}")
            if ps == 1:
                a(f"v_mul_f32 v{Lr}, v{Lr}, v22")
                a(f"v_add_f32 v{Lr}, v{Lr}, v64")
            else:
                a(f"v_mov_b32 v{Lr}, v64")
            for i in range(1, 16):
                a(f"v_add_f32 v{Lr}, v{Lr}, v{64+i}")
            for i in range(8):
                a(f"v_cvt_pk_bf16_f32 v{64+i}, v{64+2*i}, v{65+2*i}")
            if ps == 1:
                a("v_lshrrev_b32 v21, 4, v1"); a("v_lshlrev_b32 v21, 4, v21")
                for r in range(4):
                    a(f"ds_bpermute_b32 v{72+r}, v21, v22 offset:{4*r}")
                a(f"v_mov_b32 v23, v{Lr}")
                self.xred("v_add_f32", 23, 24, 16); self.xred("v_add_f32", 23, 24, 32)
                a("s_cmp_lg_u32 s3, 0"); a("s_cbranch_scc1 C_noLST")
                a(f"v_or_b32 v24, s17, v{M}")
                a("v_and_or_b32 v25, v23, v19, s17")
                a("v_lshlrev_b32 v21, 9, v1")
                a("s_sub_u32 s28, s2, 192"); a("s_lshl_b32 s28, s28, 3"); a(f"s_add_u32 s28, s28, {LST}")
                a("s_mov_b64 exec, 0xffff")
                a("buffer_store_dwordx2 v[24:25], v21, s[12:15], s28 offen sc1")
                a("s_mov_b64 exec, -1")
                a.label("C_noLST")
                a("s_waitcnt lgkmcnt(0)")
                for cb in range(16):
                    for r in range(4):
                        a(f"v_mul_f32 v{192+4*cb+r}, v{192+4*cb+r}, v{72+r}")
            for i in range(32):
                cb, s = lseq[i]
                issued = min(32, i + NT)
                a(f"s_waitcnt lgkmcnt({min(15, 2*(issued - 1 - i))})")
                c = '0' if (ps == 0 and s == 0) else vr(192+4*cb)
                a(f"v_mfma_f32_16x16x32_bf16 {vr(192+4*cb)}, {vr(64+4*s)}, {vr(104+4*(i % NB))}, {c}")
                if i + NT < 32: trd(i + NT)
            if ps == 0:
                self.lds_signal(F_P1)
                self.stamp(6)
        a("v_lshrrev_b32 v20, 4, v1"); a("v_lshlrev_b32 v20, 19, v20")
        a("v_and_b32 v21, 15, v1"); a("v_lshl_add_u32 v20, v21, 4, v20")
        a("s_sub_u32 s28, s2, 192"); a("s_lshl_b32 s28, s28, 9")
        a("s_lshl_b32 s29, s3, 15"); a("s_add_u32 s28, s28, s29"); a(f"s_add_u32 s28, s28, {LREC}")
        k = 0
        for r in range(4):
            for half in range(2):
                b = 104 + 4*(k % 8); k += 1
                for j in range(4):
                    cb = 8*half + 2*j
                    self.tagpack(b+j, 192+4*cb+r, 192+4*(cb+1)+r)
                a(f"buffer_store_dwordx4 {vr(b)}, v20, s[12:15], s28 offen offset:{256*half} sc1")
            if r != 3: a(f"s_add_u32 s28, s28, {4*32768}")
        a("v_lshlrev_b32 v21, 10, v1"); a("v_mov_b32 v23, s16")
        a("s_sub_u32 s28, s2, 192"); a("s_lshl_b32 s28, s28, 2"); a("s_lshl_b32 s29, s3, 8"); a("s_add_u32 s28, s28, s29")
        a(f"s_add_u32 s28, s28, {HL}")
        a("s_mov_b64 exec, 0xff")
        a("buffer_store_dword v23, v21, s[12:15], s28 offen sc1")
        a("s_mov_b64 exec, -1")

    def h4(self):
        a = self.a
        a("v_lshrrev_b32 v30, 4, v1"); a("v_lshlrev_b32 v30, 9, v30"); a("v_and_b32 v31, 15, v1"); a("v_lshl_add_u32 v30, v31, 4, v30")
        a("v_add_u32 v31, 0x1000, v30")
        a("v_lshlrev_b32 v29, 3, v1")
        a("v_and_b32 v20, 8, v1"); a("v_cmp_ne_u32 vcc, 0, v20")
        for w in range(4): a(f"v_cndmask_b32 v{80+w}, v{4+w}, v{8+w}, vcc")
        a("v_lshrrev_b32 v84, 4, v1"); a("s_lshl_b32 s28, s3, 4"); a("v_add_u32 v84, s28, v84"); a("v_lshlrev_b32 v84, 2, v84")
        a("s_lshl_b32 s28, s3, 11"); a(f"s_add_u32 s28, s28, {SSCR}"); a("v_lshl_add_u32 v85, v1, 4, s28")
        a("s_lshr_b32 s28, s3, 1"); a("s_lshl_b32 s28, s28, 10"); a("s_and_b32 s29, s3, 1"); a("s_lshl_b32 s29, s29, 9"); a("s_add_u32 s28, s28, s29")
        a(f"s_add_u32 s28, s28, {SSCR}")
        a("v_lshrrev_b32 v86, 3, v1"); a("v_lshl_add_u32 v86, v86, 4, s28")
        a("s_bfe_u32 s34, s100, 0x30002"); a("s_lshl_b32 s34, s34, 10")
        a("s_and_b32 s35, s100, 3"); a("s_lshl_b32 s35, s35, 8"); a("s_add_u32 s34, s34, s35")
        a("s_lshl_b32 s35, s3, 6"); a("s_add_u32 s34, s34, s35")
        self.spoll(1, "s34", HL, "-1", "s16")
        self.csync()
        self.stamp(8)
        L = a.newlabel("G4"); E = a.newlabel("G4E")
        a("s_lshl_b32 s34, s100, 15"); a("s_lshl_b32 s35, s3, 13"); a("s_add_u32 s34, s34, s35"); a(f"s_add_u32 s34, s34, {LREC}")
        a("s_lshr_b32 s35, s100, 2"); a("s_lshl_b32 s35, s35, 9"); a(f"s_add_u32 s35, s35, {LST}")
        a(f"s_mov_b32 s33, {SPIN//8}")
        a.label(L)
        a("buffer_load_dwordx2 v[64:65], v29, s[12:15], s35 offen sc1")
        for tt in range(4):
            for half in range(2):
                a(f"buffer_load_dwordx4 {vr(32+8*tt+4*half)}, v{30 + (tt >> 1)}, s[12:15], s34 offen offset:{(tt & 1)*2048 + half*256} sc1")
        a("s_sub_u32 s33, s33, 1")
        a(f"s_cbranch_scc1 {E}")
        a("s_waitcnt vmcnt(0)")
        self.vcheck(list(range(32, 64)), "0x00010001", "s18")
        self.vcheck([64, 65], "0xff", "s17", first=False)
        a("v_cmp_ne_u32 vcc, 0, v14")
        a(f"s_cbranch_vccnz {L}")
        a.label(E)
        a("s_waitcnt vmcnt(0)")
        self.stamp(9)
        a("s_cmp_lg_u32 s3, 1"); a("s_cbranch_scc1 C_noWo1")
        a("s_and_b32 s34, s100, 0x3c"); a("s_add_u32 s34, s34, s101"); a("s_and_b32 s35, s100, 3")
        self.w16_loads(22, lambda t: t, 16, "s34", "s35")
        a.label("C_noWo1")
        a("s_cmp_lg_u32 s3, 0"); a("s_cbranch_scc1 C_noWo0")
        self.w16_loads(24, lambda t: 32*(t >> 3) + 2*(t & 3) + ((t >> 2) & 1), 8, "s100", "s101")
        a.label("C_noWo0")
        a.settle(6)
        a("v_and_b32 v64, v19, v64"); a("v_and_b32 v65, v19, v65")
        a("v_mov_b32 v66, v64")
        self.allred16("v_max_f32", 66); self.xred("v_max_f32", 66, 67, 16); self.xred("v_max_f32", 66, 67, 32)
        a("v_sub_f32 v64, v64, v66"); a("v_exp_f32 v64, v64")
        a("v_mul_f32 v65, v64, v65")
        self.allred16("v_add_f32", 65); self.xred("v_add_f32", 65, 67, 16); self.xred("v_add_f32", 65, 67, 32)
        a("v_rcp_f32 v65, v65")
        a("v_mul_f32 v64, v64, v65")
        a("v_cvt_pk_bf16_f32 v66, v64, v64"); a("v_lshlrev_b32 v66, 16, v66"); a("v_sub_f32 v66, v64, v66")
        a("v_cvt_pk_bf16_f32 v64, v64, v66")
        for tt in range(4):
            a(f"ds_bpermute_b32 v{68+tt}, v84, v64 offset:{16*tt}")
        a("s_waitcnt lgkmcnt(0)")
        for tt in range(4):
            for w in range(4):
                a(f"v_perm_b32 v{88+4*tt+w}, v{68+tt}, v{68+tt}, v{80+w}")
        for tt in range(4):
            for half in range(2):
                a(f"v_mfma_f32_16x16x32_bf16 {vr(72+4*half)}, {vr(32+8*tt+4*half)}, {vr(88+4*tt)}, {'0' if tt == 0 else vr(72+4*half)}")
        a("ds_write_b128 v85, v[72:75]")
        a("ds_write_b128 v85, v[76:79] offset:1024")
        self.csync()
        for tq in range(2):
            for w in range(4):
                for sel in range(2):
                    a(f"ds_read_b128 {vr(96 + 32*tq + 8*w + 4*sel)}, v86 offset:{2048*w + 256*tq + 128*sel}")
        a("s_waitcnt lgkmcnt(0)")
        for tq in range(2):
            b = 96 + 32*tq
            for st in (16, 8, 4):
                for i in range(st):
                    a(f"v_add_f32 v{b+i}, v{b+i}, v{b+st+i}")
        a("v_cvt_pk_bf16_f32 v64, v96, v97"); a("v_cvt_pk_bf16_f32 v65, v98, v99")
        a("v_cvt_pk_bf16_f32 v66, v128, v129"); a("v_cvt_pk_bf16_f32 v67, v130, v131")
        for t in range(8):
            for w in range(4):
                a(f"v_perm_b32 v{32+4*t+w}, v{64+t//2}, v{64+t//2}, v{(8 if t & 1 else 4)+w}")
        for t in range(8):
            a(f"v_mfma_f32_16x16x32_bf16 v[72:75], {vr(160+4*t)}, {vr(32+4*t)}, {'0' if t == 0 else 'v[72:75]'}")
        a("s_lshl_b32 s28, s3, 10"); a(f"s_add_u32 s28, s28, {RED8}")
        a("v_lshl_add_u32 v20, v1, 4, s28")
        a("ds_write_b128 v20, v[72:75]")
        self.ccount += 4
        self.lds_signal(F_C)
        a("s_and_b32 s34, s100, 0x3c"); a("s_add_u32 s34, s34, s101"); a("s_lshl_b32 s34, s34, 9")
        a("s_cmp_lg_u32 s3, 0"); a("s_cbranch_scc1 C_H5")
        self.lds_wait(F_C, self.ccount)
        self.red8(28)
        a("v_mov_b32 v29, v28 quad_perm:[1,0,3,2] row_mask:0xf bank_mask:0xf")
        self.tagpack(28, 28, 29)
        a("v_lshlrev_b32 v21, 1, v1")
        a("s_and_b32 s35, s100, 3"); a("s_lshl_b32 s35, s35, 7"); a("s_add_u32 s35, s35, s34"); a(f"s_add_u32 s35, s35, {CTX}")
        a(f"v_add_u32 v22, {CT}, v21")
        a("s_mov_b32 exec_lo, 0x55555555"); a("s_mov_b32 exec_hi, 0x55555555")
        a("buffer_store_dword v28, v21, s[12:15], s35 offen sc1")
        a("ds_write_b32 v22, v28")
        a("s_mov_b64 exec, -1")
        self.lds_signal(F_CT)
        self.stamp(10)
        a("s_branch C_T0")
        a.label("C_H5")
        a("s_add_u32 s35, s100, s3"); a("s_and_b32 s35, s35, 3"); a("s_lshl_b32 s35, s35, 7"); a("s_add_u32 s34, s34, s35")
        self.spoll(2, "s34", CTX, "0x00010001", "s18")
        a("v_mov_b32 v20, 0")
        for i in range(32):
            a(f"v_writelane_b32 v20, s{36+i}, {i}")
        a("s_lshl_b32 s28, s3, 7"); a(f"s_add_u32 s28, s28, {CT}")
        a("v_lshl_add_u32 v21, v1, 2, s28")
        a("s_mov_b32 exec_hi, 0")
        a("ds_write_b32 v21, v20")
        a("s_mov_b64 exec, -1")
        self.lds_signal(F_CT)
        a("s_cmp_lg_u32 s3, 1"); a("s_cbranch_scc1 L_end")
        self.lds_wait(F_CT, 4)
        a("v_and_b32 v21, 31, v1"); a("v_lshlrev_b32 v21, 2, v21"); a(f"v_add_u32 v21, {CT}, v21")
        for k in range(4): a(f"ds_read_b32 v{24+k}, v21 offset:{128*k}")
        a("s_waitcnt lgkmcnt(0)")
        for k in range(4):
            a(f"v_lshlrev_b32 v{28+k}, 16, v{24+k}"); a(f"v_and_b32 v{24+k}, 0xffff0000, v{24+k}")
        a("v_add_f32 v28, v28, v29"); a("v_add_f32 v30, v30, v31"); a("v_add_f32 v24, v24, v25"); a("v_add_f32 v26, v26, v27")
        a("v_add_f32 v28, v28, v30"); a("v_add_f32 v24, v24, v26")
        a("v_cvt_pk_bf16_f32 v24, v28, v24")
        a(f"ds_write_b32 v21, v24 offset:{CT2-CT}")
        a("v_lshrrev_b32 v22, 4, v1"); a("v_lshlrev_b32 v22, 5, v22"); a(f"v_add_u32 v22, {CT2}, v22")
        a("s_waitcnt lgkmcnt(0)")
        a("ds_read_b128 v[24:27], v22"); a("ds_read_b128 v[28:31], v22 offset:16")
        a("s_waitcnt lgkmcnt(0)")
        self.gemv16(24)
        self.stamp(10)
        self.lds_wait(F_SD, 4, sleep=2)
        a("s_and_b32 s34, s100, 0x3c"); a("s_add_u32 s34, s34, s101"); a("s_and_b32 s35, s100, 3")
        self.publish_out(1, 96, "s34", "s35")
        self.stamp(11)
        a("s_cmp_lt_u32 s2, 128"); a("s_cbranch_scc1 C_1end")
        a("s_cmp_ge_u32 s2, 240"); a("s_cbranch_scc1 C_1end")
        a("s_sub_u32 s34, s2, 128")
        self.reduce_out(1, "s34")
        a.label("C_1end")
        self.stamp(12)
        self.dump_stamps(2)
        a("s_endpgm")

    def gemv16(self, src):
        a = self.a
        for t in range(16):
            for w in range(4):
                a(f"v_perm_b32 v{32+4*t+w}, v{src+t//2}, v{src+t//2}, v{(8 if t & 1 else 4)+w}")
        a("s_waitcnt vmcnt(0)")
        for t in range(16):
            a(f"v_mfma_f32_16x16x32_bf16 v[96:99], {vr(192+4*t)}, {vr(32+4*t)}, {'0' if t == 0 else 'v[96:99]'}")

    def tail(self):
        a = self.a
        a.label("C_T0")
        a("v_lshlrev_b32 v100, 4, v1"); a(f"v_add_u32 v101, {MRG}, v100")
        a("v_and_b32 v102, 15, v1"); a("v_lshlrev_b32 v102, 3, v102"); a(f"v_add_u32 v102, {MRGS}, v102")
        a("v_bfe_u32 v103, v1, 3, 1"); a("v_lshlrev_b32 v103, 14, v103")
        a("v_lshrrev_b32 v20, 5, v1"); a("v_lshl_add_u32 v103, v20, 12, v103")
        a("v_bfe_u32 v20, v1, 4, 1"); a("v_lshl_add_u32 v103, v20, 6, v103")
        a("v_and_b32 v20, 7, v1"); a("v_lshl_add_u32 v103, v20, 3, v103")
        a("v_add_u32 v104, 0x2000, v103")
        a("s_lshr_b32 s34, s2, 6"); a("s_lshl_b32 s34, s34, 3"); a("s_and_b32 s28, s2, 7"); a("s_add_u32 s36, s34, s28")
        a("s_bfe_u32 s37, s2, 0x30003")
        a("s_lshl_b32 s38, s37, 15"); a("s_lshl_b32 s28, s36, 7"); a("s_add_u32 s38, s38, s28"); a(f"s_add_u32 s38, s38, {OREC}")
        a("s_lshl_b32 s39, s37, 9"); a("s_lshl_b32 s28, s36, 3"); a("s_add_u32 s39, s39, s28"); a(f"s_add_u32 s39, s39, {OST}")
        a("v_lshlrev_b32 v105, 5, v1")
        a("s_lshl_b32 s40, s100, 12"); a(f"s_add_u32 s40, s40, {OREC}")
        a("s_lshr_b32 s41, s100, 2"); a("s_lshl_b32 s41, s41, 8"); a(f"s_add_u32 s41, s41, {OST}")
        a("v_and_b32 v106, 31, v1"); a("v_lshlrev_b32 v106, 3, v106")
        a("v_lshrrev_b32 v107, 3, v1"); a("v_lshlrev_b32 v107, 2, v107")
        a("v_lshrrev_b32 v108, 4, v1"); a("v_lshlrev_b32 v108, 2, v108")
        self.lds_wait(F_SD, 4, sleep=1)
        self.stamp(11)
        for w in range(4):
            a(f"ds_read_b64 v[{64+2*w}:{65+2*w}], v102 offset:{128*w}")
        for w in range(4):
            a(f"ds_read_b128 {vr(32+8*w)}, v101 offset:{2048*w}")
            a(f"ds_read_b128 {vr(36+8*w)}, v101 offset:{2048*w+1024}")
        a("s_waitcnt lgkmcnt(8)")
        a("v_max3_f32 v72, v64, v66, v68"); a("v_max_f32 v72, v72, v70"); a("v_and_b32 v72, v19, v72")
        for w in range(4): a(f"v_sub_f32 v{64+2*w}, v{64+2*w}, v72")
        for w in range(4): a(f"v_exp_f32 v{64+2*w}, v{64+2*w}")
        a("v_mul_f32 v73, v64, v65")
        for w in range(1, 4): a(f"v_fmac_f32 v73, v{64+2*w}, v{65+2*w}")
        a("v_or_b32 v72, s17, v72"); a("v_and_or_b32 v73, v73, v19, s17")
        a("s_mov_b64 exec, 0x101")
        a("buffer_store_dwordx2 v[72:73], v105, s[12:15], s39 offen sc1")
        a("s_mov_b64 exec, -1")
        a("s_waitcnt lgkmcnt(0)")
        for i in range(8): a(f"v_mul_f32 v{32+i}, v64, v{32+i}")
        for w in range(1, 4):
            for i in range(8): a(f"v_fmac_f32 v{32+i}, v{64+2*w}, v{32+8*w+i}")
        for k in range(4): self.tagpack(76+k, 32+2*k, 33+2*k)
        a("buffer_store_dwordx2 v[76:77], v103, s[12:15], s38 offen sc1")
        a("buffer_store_dwordx2 v[78:79], v104, s[12:15], s38 offen sc1")
        self.stamp(12)
        L = a.newlabel("G6"); E = a.newlabel("G6E")
        a(f"s_mov_b32 s33, {SPIN//8}")
        a.label(L)
        a("buffer_load_dwordx2 v[64:65], v106, s[12:15], s41 offen sc1")
        for i in range(4):
            a(f"buffer_load_dwordx4 {vr(112+4*i)}, v100, s[12:15], s40 offen offset:{1024*i} sc1")
        a("s_sub_u32 s33, s33, 1")
        a(f"s_cbranch_scc1 {E}")
        a("s_waitcnt vmcnt(0)")
        self.vcheck(list(range(112, 128)), "0x00010001", "s18")
        self.vcheck([64, 65], "0xff", "s17", first=False)
        a("v_cmp_ne_u32 vcc, 0, v14")
        a(f"s_cbranch_vccnz {L}")
        a.label(E)
        a("s_waitcnt vmcnt(0)")
        self.stamp(13)
        a("v_and_b32 v64, v19, v64"); a("v_and_b32 v65, v19, v65")
        a("v_mov_b32 v66, v64")
        self.allred16("v_max_f32", 66); self.xred("v_max_f32", 66, 67, 16)
        a("v_sub_f32 v64, v64, v66"); a("v_exp_f32 v64, v64")
        a("v_mul_f32 v65, v64, v65")
        self.allred16("v_add_f32", 65); self.xred("v_add_f32", 65, 67, 16)
        a("v_rcp_f32 v65, v65")
        a("v_mul_f32 v64, v64, v65")
        a("v_cvt_pk_bf16_f32 v66, v64, v64"); a("v_lshlrev_b32 v66, 16, v66"); a("v_sub_f32 v66, v64, v66")
        a("v_cvt_pk_bf16_f32 v64, v64, v66")
        for i in range(4):
            a(f"ds_bpermute_b32 v{68+i}, v107, v64 offset:{32*i}")
        a("s_waitcnt lgkmcnt(0)")
        for i in range(4):
            for w in range(4):
                a(f"v_perm_b32 v{128+4*i+w}, v{68+i}, v{68+i}, v{4+w}")
                a(f"v_perm_b32 v{144+4*i+w}, v{68+i}, v{68+i}, v{8+w}")
        for i in range(4):
            a(f"v_mfma_f32_16x16x32_bf16 v[72:75], {vr(112+4*i)}, {vr(128+4*i)}, {'0' if i == 0 else 'v[72:75]'}")
            a(f"v_mfma_f32_16x16x32_bf16 v[72:75], {vr(112+4*i)}, {vr(144+4*i)}, v[72:75]")
        for r in range(4): a(f"v_mov_b32 v{76+r}, v{72+r}")
        for r in range(4): a(f"v_permlane32_swap_b32 v{72+r}, v{76+r}")
        for r in range(4): a(f"v_add_f32 v{72+r}, v{76+r}, v{72+r} row_ror:8 row_mask:0xf bank_mask:0xf")
        a("v_cvt_pk_bf16_f32 v72, v72, v73"); a("v_cvt_pk_bf16_f32 v73, v74, v75")
        for k in range(8):
            q = k >> 1
            a(f"ds_bpermute_b32 v{24+k}, v108, v{72+(k & 1)} offset:{(16*(q >> 1) + 4*(q & 1))*4}")
        a("s_waitcnt lgkmcnt(0)")
        self.gemv16(24)
        self.publish_out(0, 96, "s100", "s101")
        self.stamp(14)
        a("s_cmp_ge_u32 s2, 112"); a("s_cbranch_scc1 C_0end")
        self.reduce_out(0, "s2")
        a("s_cmp_lg_u32 s2, 0"); a("s_cbranch_scc1 C_0end")
        a("v_mov_b32 v20, s16"); a("v_mov_b32 v21, 0")
        a("s_mov_b64 exec, 1")
        a("buffer_store_dword v20, v21, s[12:15], 0 offen sc1")
        a("s_mov_b64 exec, -1")
        a.label("C_0end")
        self.stamp(15)
        if self.diag is not None:
            a("s_cmp_lg_u32 s2, 0"); a("s_cbranch_scc1 C_dg")
            a("v_readlane_b32 s36, v12, 0"); a(f"v_readlane_b32 s37, v12, {self.diag}")
            a("s_sub_u32 s37, s37, s36"); a("s_mul_i32 s37, s37, 10"); a("s_add_u32 s37, s37, 20000")
            a.label("C_dgl")
            a("s_memrealtime vcc"); a("s_waitcnt lgkmcnt(0)")
            a("s_sub_u32 s38, vcc_lo, s36"); a("s_cmp_lt_u32 s38, s37"); a("s_cbranch_scc1 C_dgl")
            a.label("C_dg")
        self.dump_stamps(1)
        a("s_endpgm")

    def swave(self):
        a = self.a; nt = self.nt
        a("v_mov_b32 v13, 0")
        a("v_lshl_add_u32 v14, v1, 2, v2")
        a("s_mov_b64 exec, 0xffff")
        a("ds_write_b32 v14, v13")
        a("s_mov_b64 exec, -1")
        a("s_mov_b64 s[20:21], s[38:39]")
        a("s_mov_b64 s[22:23], s[40:41]")
        a("s_mov_b64 s[24:25], s[48:49]")
        self.consts()
        a("v_and_b32 v23, 3, v1"); a("v_lshlrev_b32 v23, 2, v23"); a("v_bfe_u32 v24, v1, 2, 2"); a("v_add_u32 v23, v23, v24")
        a("v_lshlrev_b32 v23, 9, v23"); a("v_lshrrev_b32 v24, 4, v1"); a("v_lshl_add_u32 v20, v24, 4, v23")
        a("v_lshlrev_b32 v21, 9, v24"); a("v_and_b32 v23, 15, v1"); a("v_lshl_add_u32 v21, v23, 4, v21")
        a("v_add_u32 v22, 0x1000, v21")
        a("v_lshlrev_b32 v18, 4, v1")
        a("s_lshr_b32 s26, s2, 6"); a("s_lshl_b32 s26, s26, 3"); a("s_and_b32 s28, s2, 7"); a("s_add_u32 s26, s26, s28")
        a("s_bfe_u32 s27, s2, 0x30003"); a("s_lshl_b32 s27, s27, 22")
        a(f"s_mov_b32 s36, {CEXP:#x}")
        a("s_waitcnt lgkmcnt(0)")
        a("s_barrier")
        a("s_cmp_lt_u32 s2, 192"); a("s_cbranch_scc1 S_A")
        self.srd(4, 24, 16 << 20)
        a("s_sub_u32 s28, s2, 192"); a("s_lshl_b32 s28, s28, 18"); a("s_lshl_b32 s29, s3, 15"); a("s_add_u32 s28, s28, s29")
        DB = self.DB
        n = 0
        for k in range(16):
            sw = (((k & 7) << 1) | (k >> 3)) * 16
            a(f"v_xor_b32 v23, {sw}, v18")
            a(f"s_add_u32 m0, s29, {k*2048}")
            for half in range(2):
                if n >= DB: a(f"s_waitcnt vmcnt({DB-1})")
                a(f"buffer_load_dwordx4 v23, s[4:7], s28 offen offset:{1024*half} {nt} lds")
                n += 1
            a("s_add_u32 s28, s28, 2048")
        a(f"s_add_u32 s28, s28, {64*2048 - 16*2048}")
        for k in range(16):
            sw = (((k & 7) << 1) | (k >> 3)) * 16
            a(f"v_xor_b32 v23, {sw}, v18")
            for half in range(2):
                a(f"s_waitcnt vmcnt({DB-1})")
                if n == 32 + DB - 1:
                    self.lds_signal(F_T); self.stamp(1)
                a(f"buffer_load_dwordx4 {vr(128+8*k+4*half)}, v23, s[4:7], s28 offen offset:{1024*half} {nt}")
                n += 1
            a("s_add_u32 s28, s28, 2048")
        a("v_add_u32 v23, s29, v18")
        a("s_waitcnt vmcnt(0)")
        self.stamp(2)
        self.lds_wait(F_P1, 8, sleep=1)
        for i in range(32):
            a(f"ds_write_b128 v23, {vr(128+4*i)} offset:{1024*i}")
        self.lds_signal(F_T)
        self.stamp(3)
        a("s_add_u32 s26, s26, 96")
        self.kv(1, "B")
        a("s_branch S_fin")
        a.label("S_A")
        a("s_mul_i32 s26, s26, 5")
        self.kv(5, "A")
        a.label("S_fin")
        a.settle()
        self.xred("v_add_f32", 27, 24, 16); self.xred("v_add_f32", 27, 24, 32)
        a("s_lshl_b32 s28, s3, 11"); a(f"s_add_u32 s28, s28, {MRG}"); a("v_add_u32 v23, s28, v18")
        a("ds_write_b128 v23, v[64:67]"); a("ds_write_b128 v23, v[68:71] offset:1024")
        a("s_lshl_b32 s28, s3, 7"); a(f"s_add_u32 s28, s28, {MRGS}"); a("v_lshl_add_u32 v23, v1, 3, s28")
        a("s_mov_b64 exec, 0xffff")
        a("ds_write_b64 v23, v[26:27]")
        a("s_mov_b64 exec, -1")
        self.lds_signal(F_SD)
        self.stamp(15)
        a("s_cmp_lg_u32 s3, 0"); a("s_cbranch_scc1 L_end")
        self.dump_stamps(0)

    def kv(self, NU, tagn):
        a = self.a; nt = self.nt; D = self.D
        a("s_add_u32 s4, s20, s27"); a("s_addc_u32 s5, s21, 0"); a(f"s_mov_b32 s6, {4<<20}"); a("s_mov_b32 s7, 0x00020000")
        a("s_add_u32 s8, s22, s27"); a("s_addc_u32 s9, s23, 0"); a(f"s_mov_b32 s10, {4<<20}"); a("s_mov_b32 s11, 0x00020000")
        a("s_lshl_b32 s30, s26, 15"); a("s_lshl_b32 s28, s3, 13"); a("s_add_u32 s30, s30, s28")
        N = 16 * NU; R = min(32, N)
        st = {"n": 0}
        def issue():
            i = st["n"]
            if i >= N: return
            u, k = divmod(i, 16)
            if k == 0 and u > 0: a("s_add_u32 s30, s30, 32768")
            if i >= D: a(f"s_waitcnt vmcnt({D-1})")
            dst = vr(128 + 4*(i % R))
            if k < 8:
                a(f"buffer_load_dwordx4 {dst}, v20, s[4:7], s30 offen offset:{64*k} {nt}")
            else:
                r, half = divmod(k - 8, 2)
                a(f"buffer_load_dwordx4 {dst}, v{21 + (r >> 1)}, s[8:11], s30 offen offset:{(r & 1)*2048 + half*256} {nt}")
            st["n"] += 1
        for _ in range(R): issue()
        self.stamp(4)
        self.lds_wait(F_QA, 1, sleep=1)
        self.stamp(5)
        a("v_bfe_u32 v23, v1, 3, 1"); a("v_lshlrev_b32 v23, 9, v23"); a("v_lshrrev_b32 v24, 4, v1"); a("v_lshl_add_u32 v23, v24, 4, v23")
        a(f"v_add_u32 v23, {QA}, v23")
        for t in range(8): a(f"ds_read_b128 {vr(32+4*t)}, v23 offset:{64*t}")
        a("s_waitcnt lgkmcnt(0)")
        M, Lr = 26, 27
        for i in range(N):
            u, k = divmod(i, 16)
            need = st["n"] - 1 - i
            if need <= D - 1: a(f"s_waitcnt vmcnt({need})")
            src = vr(128 + 4*(i % R))
            if k < 8:
                a(f"v_mfma_f32_16x16x32_bf16 v[72:75], {src}, {vr(32+4*k)}, {'0' if k == 0 else 'v[72:75]'}")
                issue()
                if k == 7:
                    if self.round_s:
                        a("v_cvt_pk_bf16_f32 v28, v72, v73"); a("v_cvt_pk_bf16_f32 v29, v74, v75")
                        a("v_lshlrev_b32 v72, 16, v28"); a("v_and_b32 v73, 0xffff0000, v28")
                        a("v_lshlrev_b32 v74, 16, v29"); a("v_and_b32 v75, 0xffff0000, v29")
                    a("v_max3_f32 v28, v72, v73, v74"); a("v_max_f32 v28, v28, v75")
                    self.xred("v_max_f32", 28, 29, 16); self.xred("v_max_f32", 28, 29, 32)
                    a("v_mul_f32 v28, s36, v28")
                    if u > 0:
                        a(f"v_max_f32 v28, v28, v{M}")
                        a(f"v_sub_f32 v30, v{M}, v28"); a("v_exp_f32 v30, v30")
                    a(f"v_mov_b32 v{M}, v28")
                    for r in range(4): a(f"v_fma_f32 v{72+r}, v{72+r}, s36, -v{M}")
                    for r in range(4): a(f"v_exp_f32 v{72+r}, v{72+r}")
                    if u > 0:
                        for r in range(8): a(f"v_mul_f32 v{64+r}, v{64+r}, v30")
                        a(f"v_fma_f32 v{Lr}, v{Lr}, v30, v72")
                    else:
                        a(f"v_mov_b32 v{Lr}, v72")
                    for r in range(1, 4): a(f"v_add_f32 v{Lr}, v{Lr}, v{72+r}")
                    a("v_cvt_pk_bf16_f32 v28, v72, v73"); a("v_cvt_pk_bf16_f32 v29, v74, v75")
                    for r in range(4):
                        for w in range(4):
                            a(f"v_perm_b32 v{76+4*r+w}, v{28+r//2}, v{28+r//2}, v{(8 if r & 1 else 4)+w}")
            else:
                r, half = divmod(k - 8, 2)
                c = '0' if (u == 0 and r == 0) else vr(64+4*half)
                a(f"v_mfma_f32_16x16x32_bf16 {vr(64+4*half)}, {src}, {vr(76+4*r)}, {c}")
                issue()

if __name__ == "__main__":
    import argparse
    ap = argparse.ArgumentParser()
    ap.add_argument("out"); ap.add_argument("--nt", default="nt"); ap.add_argument("--D", type=int, default=8); ap.add_argument("--DB", type=int, default=12)
    ap.add_argument("--nostamps", action="store_true"); ap.add_argument("--diag", type=int, default=None)
    x = ap.parse_args()
    g = G(nt=x.nt, D=x.D, DB=x.DB, stamps=not x.nostamps, diag=x.diag)
    open(x.out, "w").write(g.build())
```

```python
import sys
from asmlib import Asm, vr, sr
NAME = "concat_heads__gqa_block_cached__compressed_kv_cla__decode"

WS_STAMP = 0x1000
QREC = 0x20000; QABS = 0x40000; HQ = 0x48000; HL = 0x4A000; LST = 0x4C000
CNT = 0x4E000; CTX = 0x50000; OST = 0x60000; OREC = 0x70000; OUTP = 0xB0000; LREC = 0x100000
WS_BYTES = 0x300000
TILE = 0
SC = 131072
PS = SC
RED8 = SC
RED2 = SC + 8192
REDL = SC + 8192
MRG = SC + 16384
PB = SC + 24576
MX = SC + 28672
LB = SC + 29184
QA = SC + 29696
MRGS = SC + 30720
CT = SC + 31232
CT2 = SC + 31744
FLG = SC + 32000
(F_C, F_QA, F_T0, F_T1, F_T2, F_T3, F_X0, F_X1, F_1a, F_1b, F_2, F_3, F_SD, F_R, F_CT, F_WO, F_LD, F_H) = [FLG + 4*i for i in range(18)]
F_GO = F_R
WST = SC + 31872
LDS_BYTES = 163840
CEXP = 0x3DB8AA3B
SPIN = 200000
NSTATIC = 48

class G:
    def __init__(self, nt="nt", D=8, DB=8, stamps=True, round_s=True, diag=None, sched=((6, 1), (12, 3)), schedA=((4, 2),), goP=12, goA=4, wqd=1, p2d=4, cpat=10, pf=1, ldack=0, cpos=1, early=0, abl='', lazy=6, schedQ=(), goQ=0, bw=16):
        self.schedQ = schedQ; self.goQ = goQ; self.bw = bw
        self.cpos = cpos; self.early = early; self.abl = abl; self.lazy = lazy
        self.pf = pf; self.ldack = ldack
        self.diag = diag; self.sched = sched; self.schedA = schedA; self.goP = goP; self.goA = goA; self.wqd = wqd; self.p2d = p2d; self.cpat = cpat
        self.a = Asm(); self.nt = nt; self.D = D; self.DB = DB; self.stamps = stamps; self.round_s = round_s
        self.ccount = 0
    def stamp(self, i):
        if not self.stamps: return
        a = self.a
        a("s_memrealtime vcc")
        a("s_waitcnt lgkmcnt(0)")
        a(f"v_writelane_b32 v12, vcc_lo, {i}")
    def stamp_dyn(self):
        if not self.stamps: return
        a = self.a
        a("s_memrealtime vcc")
        a("s_mov_b32 m0, s52")
        a("s_waitcnt lgkmcnt(0)")
        a("v_writelane_b32 v12, vcc_lo, m0")
        a("s_add_u32 s52, s52, 1")
    def srd(self, d, p, nbytes, off=None):
        a = self.a
        if off is None:
            a(f"s_mov_b32 s{d}, s{p}"); a(f"s_mov_b32 s{d+1}, s{p+1}")
        else:
            a(f"s_add_u32 s{d}, s{p}, {off}"); a(f"s_addc_u32 s{d+1}, s{p+1}, 0")
        a(f"s_mov_b32 s{d+2}, {nbytes}"); a(f"s_mov_b32 s{d+3}, 0x00020000")
    def lds_signal(self, addr):
        a = self.a
        a("s_waitcnt lgkmcnt(0)")
        a("s_mov_b64 exec, 1")
        a(f"ds_add_u32 v2, v3 offset:{addr - FLG}")
        a("s_mov_b64 exec, -1")
    def lds_signal_w(self, addr):
        a = self.a
        a("s_lshl_b32 s32, s3, 2"); a("v_add_u32 v13, s32, v2")
        a("s_mov_b64 exec, 1")
        a(f"ds_add_u32 v13, v3 offset:{addr - FLG}")
        a("s_mov_b64 exec, -1")
    def lds_wait(self, addr, target, sleep=0, perwave=False):
        a = self.a
        av = 2
        if perwave:
            a("s_lshl_b32 s32, s3, 2"); a("v_add_u32 v15, s32, v2"); av = 15
        L = a.newlabel("LW"); E = a.newlabel("LE")
        a(f"s_mov_b32 s33, {SPIN}")
        a.label(L)
        a(f"ds_read_b32 v13, v{av} offset:{addr - FLG}")
        a("s_sub_u32 s33, s33, 1")
        a(f"s_cbranch_scc1 {E}")
        a("s_waitcnt lgkmcnt(0)")
        a("v_readfirstlane_b32 s32, v13")
        a(f"s_cmp_ge_u32 s32, {target}")
        if sleep:
            a(f"s_cbranch_scc1 {E}")
            a(f"s_sleep {sleep}")
            a(f"s_branch {L}")
        else:
            a(f"s_cbranch_scc0 {L}")
        a.label(E)
        a("s_waitcnt lgkmcnt(0)")
    def csync(self):
        self.ccount += 4
        self.lds_signal(F_C)
        self.lds_wait(F_C, self.ccount)
    def spoll(self, nx16, soff, imm, mask, want, lazy=0, sleep=0):
        a = self.a
        L = a.newlabel("SP"); E = a.newlabel("SE")
        a(f"s_mov_b32 s33, {SPIN//8}")
        a.label(L)
        for i in range(nx16):
            a(f"s_load_dwordx16 s[{36+16*i}:{51+16*i}], s[12:13], {soff} offset:{imm+64*i} glc")
        a("s_sub_u32 s33, s33, 1")
        a(f"s_cbranch_scc1 {E}")
        a("s_waitcnt lgkmcnt(0)")
        if lazy:
            K = a.newlabel("SK")
            a(f"s_cmp_eq_u32 s36, {want}"); a(f"s_cbranch_scc1 {K}")
            a(f"s_cmp_eq_u32 s43, {want}"); a(f"s_cbranch_scc1 {K}")
            a(f"s_sleep {lazy}"); a(f"s_branch {L}")
            a.label(K)
        n = 8 * nx16
        a("s_and_b64 s[28:29], s[36:37], s[38:39]")
        a("s_or_b64 s[30:31], s[36:37], s[38:39]")
        for i in range(2, n):
            a(f"s_and_b64 s[28:29], s[28:29], s[{36+2*i}:{37+2*i}]")
            a(f"s_or_b64 s[30:31], s[30:31], s[{36+2*i}:{37+2*i}]")
        a("s_and_b32 s28, s28, s29")
        a("s_or_b32 s30, s30, s31")
        a(f"s_xor_b32 s28, s28, {want}")
        a(f"s_xor_b32 s30, s30, {want}")
        a("s_or_b32 s28, s28, s30")
        a(f"s_and_b32 s28, s28, {mask}")
        if sleep:
            a(f"s_cbranch_scc0 {E}"); a(f"s_sleep {sleep}"); a(f"s_branch {L}")
        else:
            a(f"s_cbranch_scc1 {L}")
        a.label(E)
        a("s_waitcnt lgkmcnt(0)")
    def vcheck(self, regs, mask, want, acc=14, first=True):
        a = self.a
        tmp = acc + 1
        a(f"v_xor_b32 v{tmp}, {want}, v{regs[0]}")
        for r in regs[1:]:
            a(f"v_bitop3_b32 v{tmp}, v{r}, {want}, v{tmp} bitop3:0xbe")
        if first:
            a(f"v_and_b32 v{acc}, {mask}, v{tmp}")
        else:
            a(f"v_and_b32 v{tmp}, {mask}, v{tmp}")
            a(f"v_or_b32 v{acc}, v{acc}, v{tmp}")
    def allred16(self, op, v):
        for n in (8, 4, 2, 1):
            self.a(f"{op} v{v}, v{v}, v{v} row_ror:{n} row_mask:0xf bank_mask:0xf")
    def xred(self, op, v, t, which):
        a = self.a
        a(f"v_mov_b32 v{t}, v{v}")
        a(f"v_permlane{which}_swap_b32 v{v}, v{t}")
        a(f"{op} v{v}, v{v}, v{t}")
    def tagpack(self, d, x0, x1):
        a = self.a
        a(f"v_perm_b32 v{d}, v{x1}, v{x0}, v16")
        a(f"v_add_u32 v{d}, s19, v{d}")
        a(f"v_and_or_b32 v{d}, v{d}, v17, s18")
    def red8(self, dst):
        a = self.a
        for cw in range(4):
            for rho in range(2):
                a(f"ds_read_b32 v{20+2*cw+rho}, v18 offset:{cw*1024 + rho*640}")
        a("s_waitcnt lgkmcnt(0)")
        a("v_add_f32 v20, v20, v21"); a("v_add_f32 v22, v22, v23"); a("v_add_f32 v24, v24, v25"); a("v_add_f32 v26, v26, v27")
        a("v_add_f32 v20, v20, v22"); a("v_add_f32 v24, v24, v26")
        a(f"v_add_f32 v{dst}, v20, v24")
    def w16_loads(self, ptr, rowfn, lanerows, s_rg, s_cg):
        a = self.a
        self.srd(4, ptr, 4096*896)
        a("v_lshrrev_b32 v20, 4, v1")
        a(f"v_mul_u32_u24 v20, {lanerows*896}, v20")
        a("v_and_b32 v21, 15, v1")
        a("v_lshl_add_u32 v20, v21, 4, v20")
        a(f"s_cmp_eq_u32 {s_cg}, 3")
        a("s_cselect_b32 s28, 8, 16")
        a("v_cmp_le_u32 vcc, s28, v21")
        a("v_mov_b32 v21, 0x7ff00000")
        a("v_cndmask_b32 v20, v20, v21, vcc")
        a(f"s_mul_i32 s28, {s_rg}, {64*896}")
        a(f"s_lshl_b32 s29, {s_cg}, 8")
        a("s_add_u32 s28, s28, s29")
        for t in range(16):
            a(f"s_add_u32 s29, s28, {rowfn(t)*896}")
            a(f"buffer_load_dwordx4 {vr(192+4*t)}, v20, s[4:7], s29 offen {self.nt}")
    def publish_out(self, P, acc, s_rg, s_cg):
        a = self.a
        for r in range(4):
            a(f"v_and_or_b32 v{20+r}, v{acc+r}, v19, s17")
        a("v_lshrrev_b32 v24, 4, v1"); a("v_lshlrev_b32 v24, 7, v24")
        a("v_and_b32 v25, 7, v1"); a("v_lshl_add_u32 v24, v25, 4, v24")
        a(f"s_lshl_b32 s28, {s_rg}, 11"); a(f"s_lshl_b32 s29, {s_cg}, 9"); a("s_add_u32 s28, s28, s29")
        a(f"s_add_u32 s28, s28, {OUTP + P*131072}")
        a("s_mov_b32 exec_lo, 0x00ff00ff")
        a(f"s_cmp_eq_u32 {s_cg}, 3")
        a("s_cselect_b32 exec_hi, 0, 0x00ff00ff")
        a(f"buffer_store_dwordx4 v[20:23], v24, s[12:15], s28 offen sc1")
        a("s_mov_b64 exec, -1")
    def reduce_out(self, P, s_n):
        a = self.a
        L = a.newlabel("RO"); E = a.newlabel("RE")
        a("v_lshlrev_b32 v24, 11, v1")
        a(f"s_lshl_b32 s28, {s_n}, 4"); a(f"s_add_u32 s28, s28, {OUTP + P*131072}")
        a(f"s_mov_b32 s33, {SPIN//8}")
        a.label(L)
        a("buffer_load_dwordx4 v[20:23], v24, s[12:15], s28 offen sc1")
        a("s_sub_u32 s33, s33, 1")
        a(f"s_cbranch_scc1 {E}")
        a("s_waitcnt vmcnt(0)")
        self.vcheck([20, 21, 22, 23], "0xff", "s17")
        a("v_cmp_ne_u32 vcc, 0, v14")
        a(f"s_cbranch_vccnz {L}")
        a.label(E)
        a("s_waitcnt vmcnt(0)")
        for r in range(4): a(f"v_and_b32 v{20+r}, v19, v{20+r}")
        a("v_permlane32_swap_b32 v20, v21"); a("v_permlane32_swap_b32 v22, v23")
        a("v_add_f32 v20, v20, v21"); a("v_add_f32 v22, v22, v23")
        a("v_permlane16_swap_b32 v20, v22")
        a("v_add_f32 v20, v20, v22")
        self.allred16("v_add_f32", 20)
        a("v_cvt_pk_bf16_f32 v20, v20, v20")
        a("v_lshrrev_b32 v21, 4, v1")
        a("v_lshlrev_b32 v22, 1, v21"); a("v_and_b32 v22, 2, v22"); a("v_lshrrev_b32 v21, 1, v21"); a("v_or_b32 v21, v21, v22")
        a("v_lshlrev_b32 v21, 4, v21")
        a(f"s_lshr_b32 s28, {s_n}, 3"); a("s_lshl_b32 s28, s28, 5"); a(f"s_and_b32 s29, {s_n}, 7"); a("s_add_u32 s28, s28, s29")
        a("s_lshl_b32 s28, s28, 1"); a(f"s_add_u32 s28, s28, {(0 if P == 0 else 448)*2}")
        self.srd(8, 26, 1792)
        a("s_mov_b32 exec_lo, 0x00010001"); a("s_mov_b32 exec_hi, 0x00010001")
        a("buffer_store_short v20, v21, s[8:11], s28 offen")
        a("s_mov_b64 exec, -1")
    def dump_stamps(self, slot):
        if not self.stamps: return
        a = self.a
        a("v_lshlrev_b32 v20, 2, v1")
        a("s_lshl_b32 s28, s2, 8"); a(f"s_add_u32 s28, s28, {WS_STAMP + (0, 128, 192)[slot]}")
        a("s_mov_b32 exec_hi, 0"); a("s_mov_b32 exec_lo, " + ("-1" if slot == 0 else "0xffff"))
        a("buffer_store_dword v12, v20, s[12:15], s28 offen")
        a("s_mov_b64 exec, -1")

    def build(self):
        a = self.a
        a.raw(f"; @launch grid=(256,1,1) block=(512,1,1) lds={LDS_BYTES}")
        a.raw('.amdgcn_target "amdgcn-amd-amdhsa--gfx950"')
        a.raw(".text"); a.raw(f".globl {NAME}_kernel"); a.raw(".p2align 8"); a.raw(f".type {NAME}_kernel,@function"); a.raw(f"{NAME}_kernel:")
        a("s_cmp_ge_u32 s2, 256"); a("s_cbranch_scc1 L_end")
        if self.stamps: a("s_memrealtime s[98:99]")
        a("s_load_dwordx16 s[36:51], s[0:1], 0")
        a("s_load_dwordx8 s[52:59], s[0:1], 64")
        a("s_load_dwordx4 s[60:63], s[0:1], 96")
        a("v_and_b32 v1, 63, v0")
        a("v_lshrrev_b32 v13, 6, v0")
        a("v_mov_b32 v12, 0")
        a("v_readfirstlane_b32 s3, v13")
        a(f"v_mov_b32 v2, {FLG}")
        a("v_mov_b32 v3, 1")
        a("s_lshr_b32 s100, s2, 5"); a("s_lshl_b32 s100, s100, 3"); a("s_and_b32 s28, s2, 7"); a("s_add_u32 s100, s100, s28")
        a("s_bfe_u32 s101, s2, 0x20003")
        if self.pf:
            a("s_cmp_lg_u32 s3, 3"); a("s_cbranch_scc1 L_nopf")
            a("s_getpc_b64 s[4:5]")
            a("s_and_b32 s4, s4, 0xffffff00")
            a("s_mov_b32 s6, CODE_BYTES"); a("s_mov_b32 s7, 0x00020000")
            a("s_lshr_b32 s28, s2, 3"); a("s_and_b32 s28, s28, 7"); a("s_lshl_b32 s28, s28, 13")
            a("v_lshlrev_b32 v14, 7, v1")
            a("buffer_load_dword v255, v14, s[4:7], s28 offen")
            a.label("L_nopf")
        a("s_waitcnt lgkmcnt(0)")
        self.srd(12, 62, WS_BYTES)
        if self.stamps: a("v_writelane_b32 v12, s98, 0")
        self.stamp(9)
        a("s_load_dword s16, s[12:13], 0")
        a("s_mov_b64 s[26:27], s[58:59]")
        a("s_cmp_lt_u32 s3, 4"); a("s_cbranch_scc1 L_S")
        self.cwave()
        a.label("L_S")
        self.swave()
        a.label("L_end"); a("s_endpgm")
        a.raw("L_codeend:")
        a.raw(f".set CODE_BYTES, L_codeend - {NAME}_kernel")
        a.raw('.section .rodata,"a"'); a.raw(".p2align 6"); a.raw(f".amdhsa_kernel {NAME}_kernel")
        a.raw("  .amdhsa_next_free_vgpr 256"); a.raw("  .amdhsa_next_free_sgpr 102"); a.raw("  .amdhsa_accum_offset 256")
        a.raw("  .amdhsa_group_segment_fixed_size 0"); a.raw("  .amdhsa_kernarg_size 112"); a.raw("  .amdhsa_user_sgpr_count 2")
        a.raw("  .amdhsa_user_sgpr_kernarg_segment_ptr 1"); a.raw("  .amdhsa_system_sgpr_workgroup_id_x 1"); a.raw(".end_amdhsa_kernel")
        return a.text()

    def consts(self):
        a = self.a
        a("v_and_b32 v13, 1, v1")
        a("v_cmp_eq_u32 vcc, 1, v13")
        a("v_mov_b32 v14, 0x0c0c0100"); a("v_mov_b32 v15, 0x01000c0c")
        a("v_cndmask_b32 v14, v14, v15, vcc")
        a("v_mov_b32 v31, 0x0c0c0302"); a("v_mov_b32 v15, 0x03020c0c")
        a("v_cndmask_b32 v15, v31, v15, vcc")
        a("v_bfe_u32 v13, v1, 1, 2")
        a("v_mov_b32 v31, 0x0c0c0c0c")
        for w in range(4):
            a(f"v_cmp_eq_u32 vcc, {w}, v13")
            a(f"v_cndmask_b32 v{4+w}, v31, v14, vcc")
            a(f"v_cndmask_b32 v{8+w}, v31, v15, vcc")
        a("v_mov_b32 v16, 0x07060302")
        a("v_mov_b32 v17, 0xfffefffe")
        a("v_mov_b32 v19, 0xffffff00")
    def tags(self):
        a = self.a
        a("s_waitcnt lgkmcnt(0)")
        a("s_add_u32 s16, s16, 0x01010101")
        a("s_and_b32 s17, s16, 0xff")
        a("s_and_b32 s18, s16, 1")
        a("s_cselect_b32 s18, 0x00010001, 0")
        a("s_cselect_b32 s19, 0, 0x00010001")
    def swz(self, vd, vk, t):
        a = self.a
        a(f"v_and_b32 v{vd}, 7, v{vk}"); a(f"v_lshlrev_b32 v{vd}, 1, v{vd}")
        a(f"v_lshrrev_b32 v{t}, 3, v{vk}"); a(f"v_or_b32 v{vd}, v{vd}, v{t}")
    def row_addrs(self):
        a = self.a
        a("s_lshl_b32 s34, s3, 9")
        a("v_and_b32 v20, 15, v1"); self.swz(21, 20, 22)
        a("v_lshrrev_b32 v22, 4, v1"); a("v_lshlrev_b32 v22, 1, v22")
        a("v_xor_b32 v21, v21, v22"); a("v_lshlrev_b32 v21, 4, v21")
        a("v_lshl_add_u32 v21, v20, 11, v21"); a("v_add_u32 v21, s34, v21")
        for v in range(4):
            x = (8*(v >> 1) + (v & 1)) * 16
            a(f"v_xor_b32 v{112+v}, {x}, v21")
            a(f"v_add_u32 v{116+v}, 0x10000, v{112+v}")
    def row_read(self, dst, kb, t):
        u = t >> 1; v = (u & 1) * 2 + (t & 1)
        base = (112 if kb < 2 else 116) + v
        self.a(f"ds_read_b128 {vr(dst)}, v{base} offset:{(kb & 1)*32768 + (u >> 1)*256}")
    def tr_addrs(self):
        a = self.a
        a("s_lshl_b32 s34, s3, 9")
        a("v_lshrrev_b32 v20, 2, v1"); self.swz(21, 20, 22)
        a("v_bfe_u32 v22, v1, 1, 1"); a("v_xor_b32 v21, v21, v22"); a("v_lshlrev_b32 v21, 4, v21")
        a("v_and_b32 v22, 1, v1"); a("v_lshl_add_u32 v21, v22, 3, v21")
        a("v_lshl_add_u32 v21, v20, 11, v21"); a("v_add_u32 v21, s34, v21")
        for c in range(8):
            a(f"v_xor_b32 v{120+c}, {c*32}, v21")
    def tr_read(self, dst, cb, half):
        a = self.a
        base = 120 + (cb & 7)
        if half:
            t = 28 + (cb & 3)
            a(f"v_add_u32 v{t}, 0x10000, v{base}"); base = t
        a(f"ds_read_b64_tr_b16 v[{dst}:{dst+1}], v{base} offset:{(cb >> 3)*256}")
        a(f"ds_read_b64_tr_b16 v[{dst+2}:{dst+3}], v{base} offset:{(cb >> 3)*256 + 32768}")
    def qabs_gather(self, t3=False):
        a = self.a
        L = a.newlabel("QB"); E = a.newlabel("QBE")
        a("v_and_b32 v30, 15, v1"); a("v_lshlrev_b32 v30, 6, v30"); a("v_lshrrev_b32 v31, 4, v1"); a("v_lshl_add_u32 v30, v31, 4, v30")
        a("v_add_u32 v31, 0x1000, v30")
        a("s_lshl_b32 s35, s3, 13"); a(f"s_add_u32 s35, s35, {QABS}")
        def lds():
            for t in range(8):
                a(f"buffer_load_dwordx4 {vr(32+4*t)}, v{30+(t>>2)}, s[12:15], s35 offen offset:{1024*(t&3)} sc1")
        lds()
        if t3:
            a("s_waitcnt vmcnt(8)")
            self.lds_signal(F_T3)
        a(f"s_mov_b32 s33, {SPIN//8}")
        a.label(L)
        a("s_waitcnt vmcnt(0)")
        self.vcheck(list(range(32, 64)), "1", "s18")
        a("v_cmp_ne_u32 vcc, 0, v14")
        a(f"s_cbranch_vccz {E}")
        a("s_sub_u32 s33, s33, 1")
        a(f"s_cbranch_scc1 {E}")
        lds()
        a(f"s_branch {L}")
        a.label(E)
    def exch(self, tile, mid=None):
        a = self.a
        if mid == "main": return self.exch_main(tile)
        a("v_lshlrev_b32 v24, 4, v1"); a(f"v_add_u32 v24, {PS + tile*12288}, v24")
        a("s_mul_i32 s34, s3, 3072"); a("v_add_u32 v25, s34, v24")
        a("v_and_b32 v27, 15, v1"); a("v_lshlrev_b32 v27, 5, v27"); a(f"v_add_u32 v27, {MX}, v27")
        a("s_lshl_b32 s34, s3, 2"); a("v_add_u32 v28, s34, v27")
        a("s_lshl_b32 s34, s3, 9"); a(f"s_add_u32 s34, s34, {PB + tile*2048}"); a("v_lshl_add_u32 v29, v1, 3, s34")
    def exch_main(self, tile):
        a = self.a
        a(f"s_mov_b32 s35, {CEXP:#x}")
        J = a.newlabel("XJ"); Ls = [a.newlabel("XV") for _ in range(4)]
        a.settle(8)
        for w in range(3):
            a(f"s_cmp_eq_u32 s3, {w}"); a(f"s_cbranch_scc1 {Ls[w]}")
        for w in (3, 0, 1, 2):
            a.label(Ls[w])
            for kb in range(4):
                if kb != w:
                    a(f"ds_write_b128 v24, {vr(96+4*kb)} offset:{kb*3072 + ((w-kb-1) & 3)*1024}")
            for r in range(4): a(f"v_mov_b32 v{20+r}, v{96+4*w+r}")
            if w != 2: a(f"s_branch {J}")
        a.label(J)
        a("s_waitcnt lgkmcnt(0)"); a("s_barrier")
        for j in range(3): a(f"ds_read_b128 {vr(96+4*j)}, v25 offset:{1024*j}")
        a("s_waitcnt lgkmcnt(0)")
        for r in range(4):
            a(f"v_add_f32 v{20+r}, v{20+r}, v{96+r}"); a(f"v_add_f32 v{100+r}, v{100+r}, v{104+r}")
        for r in range(4): a(f"v_add_f32 v{20+r}, v{20+r}, v{100+r}")
        a("v_max3_f32 v26, v20, v21, v22"); a("v_max_f32 v26, v26, v23")
        self.xred("v_max_f32", 26, 30, 16); self.xred("v_max_f32", 26, 30, 32)
        a("s_mov_b64 exec, 0xffff")
        a(f"ds_write_b32 v28, v26 offset:{tile*16}")
        a("s_mov_b64 exec, -1")
        a("s_waitcnt lgkmcnt(0)"); a("s_barrier")
        a("ds_read_b128 v[96:99], v27"); a("ds_read_b128 v[100:103], v27 offset:16")
        a("s_waitcnt lgkmcnt(0)")
        a("v_max3_f32 v26, v96, v97, v98"); a("v_max3_f32 v30, v99, v100, v101"); a("v_max3_f32 v26, v26, v102, v103"); a("v_max_f32 v26, v26, v30")
        a("v_mul_f32 v26, s35, v26"); a("v_and_b32 v26, v19, v26")
        for r in range(4): a(f"v_fma_f32 v{20+r}, v{20+r}, s35, -v26")
        for r in range(4): a(f"v_exp_f32 v{20+r}, v{20+r}")
        a("v_cvt_pk_bf16_f32 v96, v20, v21"); a("v_cvt_pk_bf16_f32 v97, v22, v23")
        a("ds_write_b64 v29, v[96:97]")
        a("v_add_f32 v20, v20, v21"); a("v_add_f32 v22, v22, v23"); a("v_add_f32 v20, v20, v22")
        self.xred("v_add_f32", 20, 30, 16); self.xred("v_add_f32", 20, 30, 32)
        a("s_mov_b64 exec, 0xffff")
        a(f"ds_write_b32 v28, v20 offset:{LB - MX + tile*16}")
        a("s_mov_b64 exec, -1")
        a("s_waitcnt lgkmcnt(0)"); a("s_barrier")

    def p2_stage(self, rh):
        a = self.a; nt = self.nt
        self.srd(4, 52, 8 << 20)
        a("v_lshrrev_b32 v21, 5, v1"); a("v_and_b32 v20, 31, v1"); a("v_xor_b32 v20, v20, v21"); a("v_lshlrev_b32 v20, 4, v20")
        a("v_lshl_add_u32 v20, v21, 13, v20")
        a("s_and_b32 s28, s2, 3"); a("s_lshl_b32 s28, s28, 21")
        a("s_bfe_u32 s29, s2, 0x40002"); a("s_lshl_b32 s29, s29, 9"); a("s_add_u32 s28, s28, s29")
        a("s_lshl_b32 s29, s3, 18"); a("s_add_u32 s28, s28, s29")
        if rh: a(f"s_add_u32 s28, s28, {128*8192}")
        a("s_lshl_b32 s29, s3, 14")
        for k in range(16):
            if k >= self.p2d: a(f"s_waitcnt vmcnt({self.p2d-1})")
            a(f"v_xor_b32 v21, {((2*k) & 15)*16}, v20")
            a(f"s_add_u32 m0, s29, {rh*65536 + k*1024}")
            a(f"buffer_load_dwordx4 v21, s[4:7], s28 offen {nt} lds")
            if k != 15: a(f"s_add_u32 s28, s28, {2*8192}")
            if k == self.p2d - 1:
                self.consts(); self.tags()
        a("s_lshl_b32 s28, s3, 10"); a(f"s_add_u32 s28, s28, {RED2 + rh*512}")
        a("v_add_u32 v24, s28, v1")
        a("v_and_b32 v20, 15, v1"); a("v_lshrrev_b32 v21, 4, v1"); a("v_xor_b32 v21, v21, v20")
        a("s_and_b32 s28, s3, 1"); a("s_lshl_b32 s28, s28, 3"); a("v_xor_b32 v21, s28, v21"); a("v_lshlrev_b32 v21, 4, v21")
        a("v_lshl_add_u32 v21, v20, 9, v21")
        a("s_lshr_b32 s28, s3, 1"); a("s_lshl_b32 s28, s28, 8")
        if rh: a("s_add_u32 s28, s28, 0x10000")
        a("v_add_u32 v25, s28, v21"); a("v_xor_b32 v26, 64, v25")
        a("s_bfe_u32 s34, s2, 0x40002"); a("s_lshl_b32 s34, s34, 2"); a("s_add_u32 s34, s34, s3"); a("s_lshl_b32 s34, s34, 8")
        if rh: a("s_add_u32 s34, s34, 0x8000")
        self.stamp(1)
        self.spoll(4, "s34", QREC, "0xffff", "s16")
        for i in range(32):
            a(f"s_pack_hh_b32_b16 s{36+i}, s{36+2*i}, s{37+2*i}")
        for g in range(4):
            lo = (0xffff << (16*g)) & 0xffffffff if g < 2 else 0
            hi = (0xffff << (16*(g-2))) & 0xffffffff if g >= 2 else 0
            a(f"s_mov_b32 exec_lo, {lo:#x}"); a(f"s_mov_b32 exec_hi, {hi:#x}")
            for t in range(2):
                for w in range(4):
                    a(f"v_mov_b32 v{32+4*t+w}, s{36+16*t+4*g+w}")
        a("s_mov_b64 exec, -1")
        self.stamp(2)
        a("s_waitcnt vmcnt(0)")
        a("s_barrier")
        for rb in range(8):
            for t in range(2):
                a(f"ds_read_b128 {vr(128+8*rb+4*t)}, v{25+t} offset:{8192*rb}")
        for rb in range(8):
            a(f"s_waitcnt lgkmcnt({14 - 2*rb})")
            for t in range(2):
                a(f"v_mfma_f32_16x16x32_bf16 {vr(40+4*rb)}, {vr(128+8*rb+4*t)}, {vr(32+4*t)}, {'0' if t == 0 else vr(40+4*rb)}")
        a("s_mov_b32 exec_lo, 0x00010001"); a("s_mov_b32 exec_hi, 0x00010001")
        for rb in range(8):
            a(f"ds_write_b128 v24, {vr(40+4*rb)} offset:{64*rb}")
        a("s_mov_b64 exec, -1")
    def wuv_loads(self):
        a = self.a; nt = self.nt
        self.srd(4, 20, 8 << 20)
        a("v_lshrrev_b32 v20, 3, v1"); a("v_lshlrev_b32 v20, 17, v20")
        a("v_and_b32 v21, 7, v1"); a("v_lshl_add_u32 v20, v21, 4, v20")
        a("s_and_b32 s28, s100, 3"); a("s_lshl_b32 s28, s28, 8")
        a("s_lshr_b32 s29, s3, 1"); a("s_lshl_b32 s29, s29, 7"); a("s_add_u32 s28, s28, s29")
        a("s_and_b32 s29, s3, 1"); a("s_lshl_b32 s29, s29, 3"); a("s_add_u32 s28, s28, s29")
        a("s_lshl_b32 s28, s28, 13")
        a("s_lshr_b32 s29, s100, 2"); a("s_lshl_b32 s29, s29, 9"); a("s_add_u32 s28, s28, s29")
        a("s_lshl_b32 s29, s101, 7"); a("s_add_u32 s28, s28, s29")
        for t in range(8):
            a(f"buffer_load_dwordx4 {vr(160+4*t)}, v20, s[4:7], s28 offen {nt}")
            if t != 7: a("s_add_u32 s28, s28, 8192")

    def cwave(self):
        a = self.a; nt = self.nt
        a("s_setprio 3")
        a("s_sub_u32 s3, s3, 4")
        a("s_mov_b64 s[20:21], s[54:55]")
        a("s_mov_b64 s[22:23], s[56:57]")
        a("s_cmp_ge_u32 s2, 192"); a("s_cbranch_scc1 C_B")
        a("s_cmp_ge_u32 s2, 128"); a("s_cbranch_scc1 C_A")
        a("s_cmp_lt_u32 s2, 64")
        a("s_cselect_b32 s4, s50, s42"); a("s_cselect_b32 s5, s51, s43")
        a("s_cselect_b32 s8, s46, s36"); a("s_cselect_b32 s9, s47, s37")
        a(f"s_mov_b32 s6, {448*8192}"); a("s_mov_b32 s7, 0x00020000")
        a("s_mov_b32 s10, 896"); a("s_mov_b32 s11, 0x00020000")
        a("v_lshrrev_b32 v20, 3, v1")
        a("v_mul_u32_u24 v21, 28, v20")
        a("s_mul_i32 s28, s3, 224")
        a("buffer_load_dwordx4 v[24:27], v21, s[8:11], s28 offen")
        a("buffer_load_dwordx3 v[28:30], v21, s[8:11], s28 offen offset:16")
        a(f"v_mul_u32_u24 v20, {14*8192}, v20")
        a("v_and_b32 v21, 7, v1")
        a("v_lshl_add_u32 v20, v21, 4, v20")
        a(f"s_mul_i32 s28, s3, {112*8192}")
        a("s_and_b32 s29, s2, 63"); a("s_lshl_b32 s29, s29, 7"); a("s_add_u32 s28, s28, s29")
        for t in range(14):
            if t <= self.wqd:
                K = a.newlabel("PD")
                a("s_cmp_lt_u32 s2, 64"); a(f"s_cbranch_scc1 {K}")
                a("s_waitcnt vmcnt(0)")
                a.label(K)
            a(f"buffer_load_dwordx4 {vr(192+4*t)}, v20, s[4:7], s28 offen {nt}")
            if t != 13: a("s_add_u32 s28, s28, 8192")
        self.consts()
        self.red8_addr()
        a("s_waitcnt vmcnt(14)")
        self.stamp(13)
        for t in range(14):
            for w in range(4):
                a(f"v_perm_b32 v{128+4*t+w}, v{24+t//2}, v{24+t//2}, v{(8 if t & 1 else 4)+w}")
        self.tags()
        a("s_lshl_b32 s28, s3, 10"); a(f"s_add_u32 s28, s28, {RED8}")
        a("v_lshl_add_u32 v31, v1, 4, s28")
        a("s_and_b32 s34, s16, 0xffff")
        a("v_mov_b32 v29, 0xffff0000")
        a("v_lshlrev_b32 v30, 2, v1")
        a("s_lshl_b32 s28, s2, 8"); a(f"s_add_u32 s28, s28, {QREC}"); a("s_add_u32 s29, s28, 0x8000")
        for t in range(14):
            a(f"s_waitcnt vmcnt({13 - t})")
            a(f"v_mfma_f32_16x16x32_bf16 v[96:99], {vr(192+4*t)}, {vr(128+4*t)}, {'0' if t == 0 else 'v[96:99]'}")
        a("ds_write_b128 v31, v[96:99]")
        a("s_waitcnt lgkmcnt(0)")
        a("s_barrier")
        a("s_cmp_lg_u32 s3, 0"); a("s_cbranch_scc1 C_P1done")
        self.red8(20)
        a("v_cvt_pk_bf16_f32 v20, v20, v20")
        a("v_and_or_b32 v20, v20, v29, s34")
        a("buffer_store_dword v20, v30, s[12:15], s28 offen sc1")
        a("s_cmp_ge_u32 s2, 64"); a("s_cbranch_scc1 C_P1done")
        a("buffer_store_dword v20, v30, s[12:15], s29 offen sc1")
        a.label("C_P1done")
        self.stamp(1)
        a("s_branch C_join")
        a.label("C_A")
        self.p2_stage(1)
        self.red8_addr()
        a("v_lshlrev_b32 v20, 4, v1"); a(f"v_add_u32 v20, {RED2}, v20")
        a("v_lshrrev_b32 v21, 4, v1"); a("v_lshlrev_b32 v21, 11, v21")
        a("v_bfe_u32 v30, v1, 1, 1"); a("v_lshl_add_u32 v21, v30, 10, v21")
        a("v_bfe_u32 v30, v1, 2, 2"); a("v_lshl_add_u32 v21, v30, 4, v21")
        a("v_and_b32 v30, 1, v1"); a("v_lshl_add_u32 v21, v30, 3, v21")
        a("v_lshlrev_b32 v30, 8, v1"); a("v_mov_b32 v31, s16")
        a("s_and_b32 s34, s2, 3"); a("s_lshl_b32 s34, s34, 13"); a("s_bfe_u32 s29, s2, 0x40002"); a("s_lshl_b32 s29, s29, 6")
        a("s_add_u32 s34, s34, s29"); a(f"s_add_u32 s34, s34, {QABS}")
        a("s_and_b32 s28, s2, 3"); a("s_lshl_b32 s28, s28, 6")
        a("s_bfe_u32 s29, s2, 0x40002"); a("s_lshl_b32 s29, s29, 2"); a("s_add_u32 s28, s28, s29")
        a(f"s_add_u32 s35, s28, {HQ}")
        a("s_and_b32 s28, s18, 1"); a("s_and_b32 s29, s19, 1")
        a("s_waitcnt lgkmcnt(0)")
        a("s_barrier")
        a("s_cmp_lg_u32 s3, 0"); a("s_cbranch_scc1 C_P2done")
        for dq in range(4):
            a(f"ds_read_b128 {vr(32+4*dq)}, v20 offset:{1024*dq}")
        a("s_waitcnt lgkmcnt(0)")
        for k in range(4):
            a(f"v_add_f32 v{32+k}, v{32+k}, v{36+k}"); a(f"v_add_f32 v{40+k}, v{40+k}, v{44+k}")
        for k in range(4): a(f"v_add_f32 v{32+k}, v{32+k}, v{40+k}")
        for k in range(2):
            a(f"v_cvt_pk_bf16_f32 v{33+2*k}, v{33+2*k}, v{33+2*k}")
            a(f"v_perm_b32 v{22+k}, v{33+2*k}, v{32+2*k}, v16")
            a(f"v_add_u32 v{22+k}, s29, v{22+k}")
            a(f"v_and_or_b32 v{22+k}, v{22+k}, -2, s28")
        a("buffer_store_dwordx2 v[22:23], v21, s[12:15], s34 offen sc1")
        a("s_mov_b64 exec, 0xff")
        a("buffer_store_dword v31, v30, s[12:15], s35 offen sc1")
        a("s_mov_b64 exec, -1")
        a.label("C_P2done")
        self.stamp(3)
        a("s_branch C_join")
        a.label("C_B")
        a("s_barrier")
        self.consts()
        self.red8_addr()
        self.tr_addrs(); self.row_addrs()
        self.tags()
        self.lds_wait(F_T0, 4, sleep=1)
        for cb in range(16): self.tr_read(128 + 8*cb, cb, 0)
        self.lds_signal(F_X0)
        self.stamp(1)
        self.lds_wait(F_T1, 4, sleep=1)
        for cb in range(16): self.tr_read(132 + 8*cb, cb, 1)
        self.lds_signal(F_X1)
        self.stamp(2)
        a.label("C_join")
        a.settle()
        a("s_cmp_eq_u32 s3, 1"); a("s_cbranch_scc1 C_q1")
        self.lds_signal(F_QA)
        a("s_branch C_q2")
        a.label("C_q1")
        a("s_bfe_u32 s34, s2, 0x30003"); a("s_lshl_b32 s34, s34, 3"); a("s_and_b32 s35, s2, 7"); a("s_add_u32 s34, s34, s35"); a("s_lshl_b32 s34, s34, 8")
        self.spoll(1, "s34", QREC + 0x4000 + 192, "0xffff", "s16", sleep=4)
        self.qa_issue()
        self.qa_finish()
        a.label("C_q2")
        a.settle()
        a("s_cmp_lt_u32 s2, 192"); a("s_cbranch_scc1 C_noB")
        self.battn()
        a("s_branch C_go")
        a.label("C_noB")
        self.lds_wait(F_GO, 1, sleep=4)
        a.label("C_go")
        a.settle()
        self.wuv_loads()
        a("s_cmp_lg_u32 s3, 1"); a("s_cbranch_scc1 C_noWo1")
        a("s_and_b32 s36, s100, 0x3c"); a("s_add_u32 s36, s36, s101"); a("s_and_b32 s37, s100, 3")
        self.w16_loads(22, lambda t: t, 16, "s36", "s37")
        a.label("C_noWo1")
        self.stamp(7)
        self.h4()

    def red8_addr(self):
        a = self.a
        a("v_lshrrev_b32 v22, 5, v1"); a("v_lshlrev_b32 v22, 8, v22")
        a("v_and_b32 v23, 7, v1"); a("v_lshl_add_u32 v22, v23, 4, v22")
        a("v_bfe_u32 v23, v1, 3, 2"); a("v_lshl_add_u32 v22, v23, 2, v22")
        a(f"v_add_u32 v18, {RED8}, v22")

    def qa_issue(self):
        a = self.a
        a("v_lshlrev_b32 v96, 4, v1")
        a("s_bfe_u32 s35, s2, 0x30003"); a("s_lshl_b32 s35, s35, 11"); a(f"s_add_u32 s35, s35, {QREC + 0x4000}")
        a("buffer_load_dwordx4 v[100:103], v96, s[12:15], s35 offen sc1")
        a("buffer_load_dwordx4 v[104:107], v96, s[12:15], s35 offen offset:1024 sc1")
    def qa_finish(self):
        a = self.a
        L = a.newlabel("QA"); E = a.newlabel("QE")
        a(f"s_mov_b32 s33, {SPIN//8}")
        a.label(L)
        a("s_waitcnt vmcnt(0)")
        self.vcheck(list(range(100, 108)), "0xffff", "s16")
        a("v_cmp_ne_u32 vcc, 0, v14")
        a(f"s_cbranch_vccz {E}")
        a("s_sub_u32 s33, s33, 1")
        a(f"s_cbranch_scc1 {E}")
        self.qa_issue()
        a(f"s_branch {L}")
        a.label(E)
        for i in range(4):
            a(f"v_perm_b32 v{20+i}, v{101+2*i}, v{100+2*i}, v16")
        a("v_lshlrev_b32 v24, 3, v1"); a(f"v_add_u32 v24, {QA}, v24")
        a("ds_write_b64 v24, v[20:21]")
        a("ds_write_b64 v24, v[22:23] offset:512")
        self.lds_signal(F_QA)

    def battn(self):
        a = self.a
        self.exch(1)
        a("s_and_b32 s34, s2, 7"); a("s_lshl_b32 s34, s34, 8"); a("s_lshl_b32 s35, s3, 6"); a("s_add_u32 s34, s34, s35")
        self.spoll(1, "s34", HQ, "-1", "s16")
        self.lds_signal_w(F_H)
        self.stamp(4)
        self.qabs_gather()
        self.stamp(5)
        self.lds_wait(F_T2, 4)
        seq = [(kb, t) for kb in range(4) for t in range(8)]
        NB = 8
        for half in range(2):
            if half: self.lds_wait(F_T3, 4)
            sq = seq[16*half:16*half+16]
            for i in range(NB): self.row_read(64+4*i, *sq[i])
            for i in range(16):
                kb, t = sq[i]
                issued = min(16, i + NB)
                a(f"s_waitcnt lgkmcnt({issued - 1 - i})")
                a(f"v_mfma_f32_16x16x32_bf16 {vr(96+4*kb)}, {vr(64+4*(i % NB))}, {vr(32+4*t)}, {'0' if t == 0 else vr(96+4*kb)}")
                if i + NB < 16: self.row_read(64+4*(i % NB), *sq[i+NB])
        self.stamp(6)
        self.exch(1, "main")
        a("v_lshlrev_b32 v24, 3, v1"); a(f"v_add_u32 v24, {PB}, v24")
        for x in range(8): a(f"ds_read_b64 v[{96+2*x}:{97+2*x}], v24 offset:{512*x}")
        a("v_lshrrev_b32 v25, 4, v1"); a("v_lshlrev_b32 v25, 19, v25")
        a("v_and_b32 v21, 15, v1"); a("v_lshl_add_u32 v25, v21, 4, v25")
        a("s_sub_u32 s36, s2, 192"); a("s_lshl_b32 s36, s36, 9")
        a("s_lshl_b32 s29, s3, 15"); a("s_add_u32 s36, s36, s29"); a(f"s_add_u32 s36, s36, {LREC}")
        for r in range(1, 4): a(f"s_add_u32 s{36+r}, s36, {r*4*32768}")
        a("s_cmp_lg_u32 s3, 0"); a("s_cbranch_scc1 C_noLST")
        a(f"ds_read_b128 v[112:115], v27 offset:{LB-MX}"); a(f"ds_read_b128 v[116:119], v27 offset:{LB-MX+16}")
        a("s_waitcnt lgkmcnt(0)")
        for r in range(4): a(f"v_add_f32 v{112+r}, v{112+r}, v{116+r}")
        a("v_add_f32 v112, v112, v113"); a("v_add_f32 v114, v114, v115"); a("v_add_f32 v112, v112, v114")
        a("v_or_b32 v22, s17, v26")
        a("v_and_or_b32 v23, v112, v19, s17")
        a("v_lshlrev_b32 v21, 9, v1")
        a("s_sub_u32 s28, s2, 192"); a("s_lshl_b32 s28, s28, 3"); a(f"s_add_u32 s28, s28, {LST}")
        a("s_mov_b64 exec, 0xffff")
        a("buffer_store_dwordx2 v[22:23], v21, s[12:15], s28 offen sc1")
        a("s_mov_b64 exec, -1")
        a.label("C_noLST")
        a("s_waitcnt lgkmcnt(0)")
        self.stamp(14)
        for cb in range(16):
            for s in range(2):
                a(f"v_mfma_f32_16x16x32_bf16 {vr(32+4*cb)}, {vr(96+4*s)}, {vr(128+8*cb+4*s)}, {'0' if s == 0 else vr(32+4*cb)}")
            for s in range(2): self.tr_read(128+8*cb+4*s, cb, s)
        def pack_store(r, half, b):
            for j in range(4):
                cb = 8*half + 2*j
                self.tagpack(b+j, 32+4*cb+r, 32+4*(cb+1)+r)
            if "s" not in self.abl: a(f"buffer_store_dwordx4 {vr(b)}, v25, s[12:15], s{36+r} offen offset:{256*half} sc1")
        for cb in range(16):
            a(f"s_waitcnt lgkmcnt({min(15, 4*(15-cb))})")
            for s in range(2):
                a(f"v_mfma_f32_16x16x32_bf16 {vr(32+4*cb)}, {vr(104+4*s)}, {vr(128+8*cb+4*s)}, {vr(32+4*cb)}")
            if cb >= 9 and cb & 1: pack_store((cb-9)//2, 0, 112 + 4*((cb-9)//2))
        for r in range(4): pack_store(r, 1, 128 + 4*r)
        a("v_lshlrev_b32 v21, 10, v1"); a("v_mov_b32 v23, s16")
        a("s_sub_u32 s28, s2, 192"); a("s_lshl_b32 s28, s28, 2"); a("s_lshl_b32 s29, s3, 8"); a("s_add_u32 s28, s28, s29")
        a(f"s_add_u32 s28, s28, {HL}")
        a("s_mov_b64 exec, 0xff")
        a("buffer_store_dword v23, v21, s[12:15], s28 offen sc1")
        a("s_mov_b64 exec, -1")
        self.stamp(15)
        if self.ldack: a("s_waitcnt vmcnt(0)")
        self.lds_signal(F_LD)

    def wpack(self, d, x, t):
        a = self.a
        a(f"v_cvt_pk_bf16_f32 v{t}, v{x}, v{x}"); a(f"v_lshlrev_b32 v{t}, 16, v{t}"); a(f"v_sub_f32 v{t}, v{x}, v{t}")
        a(f"v_cvt_pk_bf16_f32 v{d}, v{x}, v{t}")
    def lweights(self, steps):
        a = self.a
        for i in range(8): a(f"v_and_b32 v{64+i}, v19, v{64+i}")
        a("v_max3_f32 v72, v64, v66, v68"); a("v_max_f32 v72, v72, v70")
        def red(op, v):
            if steps == 3: a(f"{op} v{v}, v{v}, v{v} row_ror:8 row_mask:0xf bank_mask:0xf")
            self.xred(op, v, 74, 16); self.xred(op, v, 74, 32)
        red("v_max_f32", 72)
        for i in range(4): a(f"v_sub_f32 v{64+2*i}, v{64+2*i}, v72")
        for i in range(4): a(f"v_exp_f32 v{64+2*i}, v{64+2*i}")
        a("v_mul_f32 v73, v64, v65")
        for i in range(1, 4): a(f"v_fmac_f32 v73, v{64+2*i}, v{65+2*i}")
        for i in range(4): a(f"v_cvt_pk_bf16_f32 v{65+2*i}, v{64+2*i}, v{64+2*i}")
        for i in range(4): a(f"v_lshlrev_b32 v{65+2*i}, 16, v{65+2*i}")
        for i in range(4): a(f"v_sub_f32 v{65+2*i}, v{64+2*i}, v{65+2*i}")
        for i in range(4): a(f"v_cvt_pk_bf16_f32 v{64+2*i}, v{64+2*i}, v{65+2*i}")
        return red

    def h4(self):
        a = self.a
        a("v_lshrrev_b32 v29, 4, v1"); a("v_lshlrev_b32 v30, 11, v29"); a("v_and_b32 v31, 15, v1"); a("v_lshl_add_u32 v30, v31, 4, v30")
        a("v_lshlrev_b32 v29, 5, v29")
        a("v_and_b32 v20, 8, v1"); a("v_cmp_ne_u32 vcc, 0, v20")
        for w in range(4): a(f"v_cndmask_b32 v{80+w}, v{4+w}, v{8+w}, vcc")
        a("s_lshl_b32 s28, s3, 3"); a(f"s_add_u32 s28, s28, {WST}"); a("v_mov_b32 v84, s28")
        a(f"v_mov_b32 v31, {WST}")
        a("s_lshl_b32 s28, s3, 11"); a(f"s_add_u32 s28, s28, {REDL}"); a("v_lshl_add_u32 v85, v1, 4, s28")
        a("s_lshr_b32 s28, s3, 1"); a("s_lshl_b32 s28, s28, 10"); a("s_and_b32 s29, s3, 1"); a("s_lshl_b32 s29, s29, 9"); a("s_add_u32 s28, s28, s29")
        a(f"s_add_u32 s28, s28, {REDL}")
        a("v_lshrrev_b32 v86, 3, v1"); a("v_lshl_add_u32 v86, v86, 4, s28")
        a("s_lshl_b32 s28, s3, 10"); a(f"s_add_u32 s28, s28, {RED8}"); a("v_lshl_add_u32 v87, v1, 4, s28")
        a("s_bfe_u32 s34, s100, 0x30002"); a("s_lshl_b32 s34, s34, 10")
        a("s_and_b32 s35, s100, 3"); a("s_lshl_b32 s35, s35, 8"); a("s_add_u32 s34, s34, s35")
        a("s_lshl_b32 s35, s3, 6"); a("s_add_u32 s34, s34, s35")
        a("s_lshl_b32 s60, s100, 15"); a("s_lshl_b32 s35, s3, 13"); a("s_add_u32 s60, s60, s35"); a(f"s_add_u32 s60, s60, {LREC}")
        a("s_lshr_b32 s61, s100, 2"); a("s_lshl_b32 s61, s61, 9"); a("s_lshl_b32 s35, s3, 7"); a("s_add_u32 s61, s61, s35"); a(f"s_add_u32 s61, s61, {LST}")
        self.spoll(1, "s34", HL, "-1", "s16", lazy=self.lazy)
        self.stamp(8)
        L = a.newlabel("G4"); E = a.newlabel("G4E")
        a(f"s_mov_b32 s36, {SPIN//8}")
        a.label(L)
        a("buffer_load_dwordx4 v[64:67], v29, s[12:15], s61 offen sc1")
        a("buffer_load_dwordx4 v[68:71], v29, s[12:15], s61 offen offset:16 sc1")
        for tt in range(4):
            for half in range(2):
                if "l" not in self.abl: a(f"buffer_load_dwordx4 {vr(32+8*tt+4*half)}, v30, s[12:15], s60 offen offset:{tt*512 + half*256} sc1")
        a("s_waitcnt vmcnt(8)" if "l" not in self.abl else "s_waitcnt vmcnt(0)")
        self.vcheck(list(range(64, 72)), "0xff", "s17")
        red = self.lweights(2)
        red("v_add_f32", 73)
        for tt in range(4):
            for w in range(4):
                a(f"v_perm_b32 v{88+4*tt+w}, v{64+2*tt}, v{64+2*tt}, v{80+w}")
        a("s_waitcnt vmcnt(0)")
        for tt in range(4):
            for half in range(2):
                a(f"v_mfma_f32_16x16x32_bf16 {vr(104+4*half)}, {vr(32+8*tt+4*half)}, {vr(88+4*tt)}, {'0' if tt == 0 else vr(104+4*half)}")
        if "s" not in self.abl and "l" not in self.abl: self.vcheck(list(range(32, 64)), "0x00010001", "s18", first=False)
        a("v_cmp_ne_u32 vcc, 0, v14")
        a(f"s_cbranch_vccz {E}")
        a("s_sub_u32 s36, s36, 1")
        a(f"s_cbranch_scc0 {L}")
        a.label(E)
        self.stamp(9)
        a("ds_write_b128 v85, v[104:107]")
        a("ds_write_b128 v85, v[108:111] offset:1024")
        a("s_mov_b64 exec, 1")
        a("ds_write_b64 v84, v[72:73]")
        a("s_mov_b64 exec, -1")
        self.csync()
        a("ds_read_b128 v[64:67], v31"); a("ds_read_b128 v[68:71], v31 offset:16")
        for tq in range(2):
            for w in range(4):
                for sel in range(2):
                    a(f"ds_read_b128 {vr(96 + 32*tq + 8*w + 4*sel)}, v86 offset:{2048*w + 256*tq + 128*sel}")
        a("s_waitcnt lgkmcnt(15)")
        a("v_max3_f32 v72, v64, v66, v68"); a("v_max_f32 v72, v72, v70")
        for i in range(4): a(f"v_sub_f32 v{64+2*i}, v{64+2*i}, v72")
        for i in range(4): a(f"v_exp_f32 v{64+2*i}, v{64+2*i}")
        a("v_mul_f32 v73, v64, v65")
        for i in range(1, 4): a(f"v_fmac_f32 v73, v{64+2*i}, v{65+2*i}")
        a("v_rcp_f32 v73, v73")
        for i in range(4): a(f"v_mul_f32 v{64+2*i}, v{64+2*i}, v73")
        for tq in range(2):
            a(f"s_waitcnt lgkmcnt({8*(1-tq)})")
            b = 96 + 32*tq
            for w in range(4):
                for i in range(4): a(f"v_add_f32 v{b+8*w+i}, v{b+8*w+i}, v{b+8*w+4+i}")
            for i in range(4): a(f"v_mul_f32 v{b+i}, v64, v{b+i}")
            for w in range(1, 4):
                for i in range(4): a(f"v_fmac_f32 v{b+i}, v{64+2*w}, v{b+8*w+i}")
            a(f"v_cvt_pk_bf16_f32 v{76+2*tq}, v{b}, v{b+1}"); a(f"v_cvt_pk_bf16_f32 v{77+2*tq}, v{b+2}, v{b+3}")
            for t in range(4*tq, 4*tq+4):
                for w in range(4):
                    a(f"v_perm_b32 v{32+4*t+w}, v{76+t//2}, v{76+t//2}, v{(8 if t & 1 else 4)+w}")
            for t in range(4*tq, 4*tq+4):
                a(f"v_mfma_f32_16x16x32_bf16 v[72:75], {vr(160+4*t)}, {vr(32+4*t)}, {'0' if t == 0 else 'v[72:75]'}")
        a("ds_write_b128 v87, v[72:75]")
        self.ccount += 4
        self.lds_signal(F_C)
        a("s_and_b32 s34, s100, 0x3c"); a("s_add_u32 s34, s34, s101"); a("s_lshl_b32 s34, s34, 9")
        a("s_cmp_lg_u32 s3, 0"); a("s_cbranch_scc1 C_H5")
        a("v_lshlrev_b32 v30, 1, v1")
        a("s_and_b32 s35, s100, 3"); a("s_lshl_b32 s35, s35, 7"); a("s_add_u32 s35, s35, s34"); a(f"s_add_u32 s35, s35, {CTX}")
        a(f"v_add_u32 v31, {CT}, v30")
        self.lds_wait(F_C, self.ccount)
        self.red8(28)
        a("v_mov_b32 v29, v28 quad_perm:[1,0,3,2] row_mask:0xf bank_mask:0xf")
        self.tagpack(28, 28, 29)
        a("s_mov_b32 exec_lo, 0x55555555"); a("s_mov_b32 exec_hi, 0x55555555")
        a("buffer_store_dword v28, v30, s[12:15], s35 offen sc1")
        a("ds_write_b32 v31, v28")
        a("s_mov_b64 exec, -1")
        self.lds_signal(F_CT)
        self.stamp(10)
        self.dump_stamps(1)
        a("s_endpgm")
        a.label("C_H5")
        a("s_add_u32 s35, s100, s3"); a("s_and_b32 s35, s35, 3"); a("s_lshl_b32 s35, s35, 7"); a("s_add_u32 s34, s34, s35")
        self.spoll(2, "s34", CTX, "0x00010001", "s18")
        a("v_mov_b32 v20, 0")
        for i in range(32):
            a(f"v_writelane_b32 v20, s{36+i}, {i}")
        a("s_lshl_b32 s28, s3, 7"); a(f"s_add_u32 s28, s28, {CT}")
        a("v_lshl_add_u32 v21, v1, 2, s28")
        a("s_mov_b32 exec_hi, 0")
        a("ds_write_b32 v21, v20")
        a("s_mov_b64 exec, -1")
        self.lds_signal(F_CT)
        a("s_cmp_lg_u32 s3, 1"); a("s_cbranch_scc1 L_end")
        a("v_and_b32 v21, 31, v1"); a("v_lshlrev_b32 v21, 2, v21"); a(f"v_add_u32 v21, {CT}, v21")
        a("v_lshrrev_b32 v22, 4, v1"); a("v_lshlrev_b32 v22, 5, v22"); a(f"v_add_u32 v22, {CT2}, v22")
        self.lds_wait(F_CT, 4)
        for k in range(4): a(f"ds_read_b32 v{24+k}, v21 offset:{128*k}")
        a("s_waitcnt lgkmcnt(0)")
        for k in range(4):
            a(f"v_lshlrev_b32 v{28+k}, 16, v{24+k}"); a(f"v_and_b32 v{24+k}, 0xffff0000, v{24+k}")
        a("v_add_f32 v28, v28, v29"); a("v_add_f32 v30, v30, v31"); a("v_add_f32 v24, v24, v25"); a("v_add_f32 v26, v26, v27")
        a("v_add_f32 v28, v28, v30"); a("v_add_f32 v24, v24, v26")
        a("v_cvt_pk_bf16_f32 v24, v28, v24")
        a(f"ds_write_b32 v21, v24 offset:{CT2-CT}")
        a("s_waitcnt lgkmcnt(0)")
        a("ds_read_b128 v[24:27], v22"); a("ds_read_b128 v[28:31], v22 offset:16")
        a("s_waitcnt lgkmcnt(0) vmcnt(0)")
        self.gemv16(24)
        self.stamp(10)
        self.lds_wait(F_SD, 4, sleep=2)
        a("s_and_b32 s34, s100, 0x3c"); a("s_add_u32 s34, s34, s101"); a("s_and_b32 s35, s100, 3")
        self.publish_out(1, 96, "s34", "s35")
        self.stamp(11)
        a("s_cmp_lt_u32 s2, 128"); a("s_cbranch_scc1 C_1end")
        a("s_cmp_ge_u32 s2, 240"); a("s_cbranch_scc1 C_1end")
        a("s_sub_u32 s34, s2, 128")
        self.reduce_out(1, "s34")
        a.label("C_1end")
        self.stamp(12)
        self.dump_stamps(2)
        a("s_endpgm")

    def gemv16(self, src):
        a = self.a
        def prep(t):
            for w in range(4):
                a(f"v_perm_b32 v{32+4*t+w}, v{src+t//2}, v{src+t//2}, v{(8 if t & 1 else 4)+w}")
        prep(0)
        for t in range(16):
            if t < 15: prep(t+1)
            a(f"v_mfma_f32_16x16x32_bf16 v[96:99], {vr(192+4*t)}, {vr(32+4*t)}, {'0' if t == 0 else 'v[96:99]'}")

    def tail(self):
        a = self.a
        a(f"v_add_u32 v101, {MRG}, v18")
        a("v_and_b32 v102, 15, v1"); a("v_lshlrev_b32 v102, 3, v102"); a(f"v_add_u32 v102, {MRGS}, v102")
        self.lds_wait(F_SD, 4)
        self.stamp(11)
        for w in range(4):
            a(f"ds_read_b64 v[{64+2*w}:{65+2*w}], v102 offset:{128*w}")
        for w in range(4):
            a(f"ds_read_b128 {vr(32+8*w)}, v101 offset:{2048*w}")
            a(f"ds_read_b128 {vr(36+8*w)}, v101 offset:{2048*w+1024}")
        a("s_waitcnt lgkmcnt(8)")
        a("v_max3_f32 v72, v64, v66, v68"); a("v_max_f32 v72, v72, v70"); a("v_and_b32 v72, v19, v72")
        for w in range(4): a(f"v_sub_f32 v{64+2*w}, v{64+2*w}, v72")
        for w in range(4): a(f"v_exp_f32 v{64+2*w}, v{64+2*w}")
        a("v_mul_f32 v73, v64, v65")
        for w in range(1, 4): a(f"v_fmac_f32 v73, v{64+2*w}, v{65+2*w}")
        a("v_or_b32 v72, s17, v72"); a("v_and_or_b32 v73, v73, v19, s17")
        a("s_mov_b64 exec, 0x101")
        a("buffer_store_dwordx2 v[72:73], v105, s[12:15], s39 offen sc1")
        a("s_mov_b64 exec, -1")
        a("s_waitcnt lgkmcnt(0)")
        for i in range(8): a(f"v_mul_f32 v{32+i}, v64, v{32+i}")
        for w in range(1, 4):
            for i in range(8): a(f"v_fmac_f32 v{32+i}, v{64+2*w}, v{32+8*w+i}")
        for k in range(4): self.tagpack(76+k, 32+2*k, 33+2*k)
        a("buffer_store_dwordx2 v[76:77], v103, s[12:15], s38 offen sc1")
        a("buffer_store_dwordx2 v[78:79], v104, s[12:15], s38 offen sc1")
        self.stamp(12)
        def h6_loads():
            a("buffer_load_dwordx4 v[64:67], v106, s[12:15], s41 offen sc1")
            a("buffer_load_dwordx4 v[68:71], v106, s[12:15], s41 offen offset:16 sc1")
            for i in range(4):
                a(f"buffer_load_dwordx4 {vr(112+4*i)}, v107, s[12:15], s40 offen offset:{128*i} sc1")
        h6_loads()
        a("s_waitcnt vmcnt(9)")
        self.lds_signal(F_WO)
        self.lds_wait(F_WO, 4)
        for t in range(16): a(f"ds_read_b128 {vr(192+4*t)}, v18 offset:{1024*t}")
        L = a.newlabel("G6"); E = a.newlabel("G6E")
        a(f"s_mov_b32 s33, {SPIN//8}")
        a.label(L)
        a("s_waitcnt vmcnt(0)")
        self.vcheck(list(range(112, 128)), "0x00010001", "s18")
        self.vcheck(list(range(64, 72)), "0xff", "s17", first=False)
        a("v_cmp_ne_u32 vcc, 0, v14")
        a(f"s_cbranch_vccz {E}")
        a("s_sub_u32 s33, s33, 1")
        a(f"s_cbranch_scc1 {E}")
        h6_loads()
        a(f"s_branch {L}")
        a.label(E)
        self.stamp(13)
        red = self.lweights(3)
        for i in range(4):
            for w in range(4):
                a(f"v_perm_b32 v{128+4*i+w}, v{64+2*i}, v{64+2*i}, v{4+w}")
            for w in range(4):
                a(f"v_perm_b32 v{144+4*i+w}, v{64+2*i}, v{64+2*i}, v{8+w}")
            a(f"v_mfma_f32_16x16x32_bf16 v[80:83], {vr(112+4*i)}, {vr(128+4*i)}, {'0' if i == 0 else 'v[80:83]'}")
            a(f"v_mfma_f32_16x16x32_bf16 v[80:83], {vr(112+4*i)}, {vr(144+4*i)}, v[80:83]")
        red("v_add_f32", 73)
        a("v_rcp_f32 v84, v73")
        for r in range(4): a(f"v_mul_f32 v{72+r}, v{80+r}, v84")
        for r in range(4): a(f"v_mov_b32 v{76+r}, v{72+r}")
        for r in range(4): a(f"v_permlane32_swap_b32 v{72+r}, v{76+r}")
        for r in range(4): a(f"v_add_f32 v{72+r}, v{76+r}, v{72+r} row_ror:8 row_mask:0xf bank_mask:0xf")
        a("v_cvt_pk_bf16_f32 v72, v72, v73"); a("v_cvt_pk_bf16_f32 v73, v74, v75")
        for k in range(8):
            q = k >> 1
            a(f"ds_bpermute_b32 v{24+k}, v108, v{72+(k & 1)} offset:{(16*(q >> 1) + 4*(q & 1))*4}")
        a("s_waitcnt lgkmcnt(0)")
        self.gemv16(24)
        self.publish_out(0, 96, "s100", "s101")
        self.stamp(14)
        a("s_cmp_ge_u32 s2, 112"); a("s_cbranch_scc1 S_0end")
        self.reduce_out(0, "s2")
        a("s_cmp_lg_u32 s2, 0"); a("s_cbranch_scc1 S_0end")
        a("v_mov_b32 v20, s16"); a("v_mov_b32 v21, 0")
        a("s_mov_b64 exec, 1")
        a("buffer_store_dword v20, v21, s[12:15], 0 offen sc1")
        a("s_mov_b64 exec, -1")
        a.label("S_0end")
        self.stamp(15)
        if self.diag is not None:
            a("s_cmp_lg_u32 s2, 0"); a("s_cbranch_scc1 S_dg")
            a("v_readlane_b32 s36, v12, 0"); a(f"v_readlane_b32 s37, v12, {self.diag}")
            a("s_sub_u32 s37, s37, s36"); a("s_mul_i32 s37, s37, 10"); a("s_add_u32 s37, s37, 20000")
            a.label("S_dgl")
            a("s_memrealtime vcc"); a("s_waitcnt lgkmcnt(0)")
            a("s_sub_u32 s38, vcc_lo, s36"); a("s_cmp_lt_u32 s38, s37"); a("s_cbranch_scc1 S_dgl")
            a.label("S_dg")
        self.dump_stamps(0)

    def tail_addrs(self):
        a = self.a
        a("v_bfe_u32 v103, v1, 3, 1"); a("v_lshlrev_b32 v103, 14, v103")
        a("v_lshrrev_b32 v23, 5, v1"); a("v_lshl_add_u32 v103, v23, 12, v103")
        a("v_bfe_u32 v23, v1, 4, 1"); a("v_lshl_add_u32 v103, v23, 6, v103")
        a("v_and_b32 v23, 7, v1"); a("v_lshl_add_u32 v103, v23, 3, v103")
        a("v_add_u32 v104, 0x2000, v103")
        a("s_lshr_b32 s34, s2, 6"); a("s_lshl_b32 s34, s34, 3"); a("s_and_b32 s28, s2, 7"); a("s_add_u32 s34, s34, s28")
        a("s_bfe_u32 s35, s2, 0x30003")
        a("s_lshl_b32 s38, s35, 15"); a("s_lshl_b32 s28, s34, 7"); a("s_add_u32 s38, s38, s28"); a(f"s_add_u32 s38, s38, {OREC}")
        a("s_lshl_b32 s39, s35, 9"); a("s_lshl_b32 s28, s34, 3"); a("s_add_u32 s39, s39, s28"); a(f"s_add_u32 s39, s39, {OST}")
        a("v_lshlrev_b32 v105, 5, v1")
        a("s_lshl_b32 s40, s100, 12"); a(f"s_add_u32 s40, s40, {OREC}")
        a("s_lshr_b32 s41, s100, 2"); a("s_lshl_b32 s41, s41, 8"); a(f"s_add_u32 s41, s41, {OST}")
        a("v_lshrrev_b32 v106, 3, v1"); a("v_lshlrev_b32 v107, 9, v106"); a("v_lshlrev_b32 v106, 5, v106")
        a("v_and_b32 v23, 7, v1"); a("v_lshl_add_u32 v107, v23, 4, v107")
        a("v_lshrrev_b32 v108, 4, v1"); a("v_lshlrev_b32 v108, 2, v108")
        a("v_lshrrev_b32 v109, 4, v1"); a(f"v_mul_u32_u24 v109, {8*896}, v109")
        a("v_and_b32 v23, 15, v1"); a("v_lshl_add_u32 v109, v23, 4, v109")
        a("s_cmp_eq_u32 s101, 3"); a("s_cselect_b32 s28, 8, 16")
        a("v_cmp_le_u32 vcc, s28, v23"); a("v_mov_b32 v23, 0x7ff00000"); a("v_cndmask_b32 v109, v109, v23, vcc")
        a("s_lshl_b32 s42, s100, 6"); a("s_lshr_b32 s28, s3, 1"); a("s_lshl_b32 s28, s28, 5"); a("s_add_u32 s42, s42, s28")
        a("s_and_b32 s28, s3, 1"); a("s_add_u32 s42, s42, s28"); a("s_mul_i32 s42, s42, 896")
        a("s_lshl_b32 s28, s101, 8"); a("s_add_u32 s42, s42, s28")
        a("s_lshl_b32 s43, s3, 12")

    def swave(self):
        a = self.a; nt = self.nt
        a("v_mov_b32 v13, 0")
        a("v_lshl_add_u32 v14, v1, 2, v2")
        a("s_mov_b32 exec_hi, 0")
        a("ds_write_b32 v14, v13")
        a("s_mov_b64 exec, -1")
        a("s_mov_b64 s[20:21], s[38:39]")
        a("s_mov_b64 s[22:23], s[40:41]")
        a("s_mov_b64 s[24:25], s[44:45]")
        a("v_lshlrev_b32 v18, 4, v1")
        a("s_cmp_lt_u32 s2, 128"); a("s_cbranch_scc1 S_P")
        a("s_cmp_lt_u32 s2, 192"); a("s_cbranch_scc1 S_A")
        self.srd(4, 48, 16 << 20)
        a("s_sub_u32 s28, s2, 192"); a("s_lshl_b32 s28, s28, 18"); a("s_lshl_b32 s29, s3, 14"); a("s_add_u32 s47, s28, s29")
        a("s_mov_b32 s48, s29")
        a("s_and_b32 s28, s3, 1"); a("s_lshl_b32 s28, s28, 4"); a("v_xor_b32 v110, s28, v18")
        DB = self.DB
        assert DB <= 16 and DB % 2 == 0
        n = 0
        FT = [F_T0, F_T1, F_T2, F_T3]
        CP = self.cpat
        for q in range(4):
            for i in range(8):
                if q >= 2 and i == 0:
                    self.lds_wait([F_X0, F_X1][q-2], 8)
                    self.stamp(q - 1)
                if q in (1, 2) and 2*i == CP:
                    self.lds_wait(FT[q-1], 4)
                    for kb in range(2):
                        for t in range(8): self.row_read(128 + 64*(q-1) + 32*kb + 4*t, 2*(q-1) + kb, t)
                    self.lds_signal([F_X0, F_X1][q-1])
                if n == DB:
                    a("s_waitcnt lgkmcnt(0)"); a("s_barrier")
                    self.consts(); self.row_addrs(); self.tags()
                a(f"v_xor_b32 v23, {i*32}, v110")
                a(f"s_add_u32 m0, s48, {(q & 1)*65536 + i*2048}")
                a(f"s_add_u32 s28, s47, {q*65536 + i*2048}")
                for half in range(2):
                    if n >= DB: a(f"s_waitcnt vmcnt({DB-1})")
                    if (n - (DB - 1)) % 16 == 0 and n - (DB-1) >= 16:
                        self.lds_signal(FT[(n - (DB-1)) // 16 - 1])
                    a(f"buffer_load_dwordx4 v23, s[4:7], s28 offen offset:{1024*half} {nt} lds")
                    n += 1
        self.exch(0)
        self.lds_wait(F_H, 1, perwave=True)
        self.qabs_gather(t3=True)
        self.stamp(3)
        for kb in range(4):
            for t in range(8):
                a(f"v_mfma_f32_16x16x32_bf16 {vr(96+4*kb)}, {vr(128+32*kb+4*t)}, {vr(32+4*t)}, {'0' if t == 0 else vr(96+4*kb)}")
        self.exch(0, "main")
        self.stamp(6)
        self.kv_setup()
        self.claim()
        self.q_ops()
        self.lds_wait(F_LD, 4, sleep=1)
        a("s_branch S_next")
        a.label("S_A")
        self.p2_stage(0)
        self.kv_setup()
        a("s_and_b32 s44, s2, 7"); a("s_add_u32 s44, s44, 16")
        a("s_waitcnt lgkmcnt(0)"); a("s_barrier")
        self.kv_prologue(self.schedA, self.goA)
        a("s_branch S_pro")
        a.label("S_P")
        self.consts(); self.tags()
        self.kv_setup()
        a("s_lshr_b32 s44, s2, 6"); a("s_lshl_b32 s44, s44, 3"); a("s_and_b32 s28, s2, 7"); a("s_add_u32 s44, s44, s28")
        a("s_cmp_lg_u32 s44, 0"); a("s_cbranch_scc1 S_noinit")
        a(f"v_mov_b32 v28, {NSTATIC}"); a("v_mov_b32 v29, s16"); a("v_mov_b32 v30, 0")
        a(f"s_add_u32 s28, s49, {CNT}")
        a("s_mov_b64 exec, 1")
        a("buffer_store_dwordx2 v[28:29], v30, s[12:15], s28 offen sc1")
        a("s_mov_b64 exec, -1")
        a.label("S_noinit")
        a("s_barrier")
        a("s_cmp_lt_u32 s2, 64"); a("s_cbranch_scc1 S_P0")
        self.kv_prologue(self.schedQ, self.goQ)
        a("s_branch S_pro")
        a.label("S_P0")
        self.kv_prologue(self.sched, self.goP)
        a.label("S_pro")
        self.stamp(4)
        self.q_ops()
        self.stamp(5)
        a("s_waitcnt vmcnt(16)")
        self.unit_qk(1)
        for k in range(8): self.pv(k, 1)
        a.raw(".p2align 6")
        a.label("S_loop")
        if self.cpos == 0: self.claim()
        a("s_waitcnt vmcnt(8)")
        self.unit_qk(0, claim=(self.cpos == 1))
        if self.early:
            self.claim_check("S_exit")
            for k in range(8): self.issueK(k, 0, None)
            for k in range(8):
                a(f"s_waitcnt vmcnt(15)")
                self.pv(k, 0)
                self.issueV(k, 0, None)
            a("s_branch S_loop")
            a.label("S_next")
            self.claim_check("S_exit0")
            for k in range(8): self.issueK(k, 0, None)
            for k in range(8): self.issueV(k, 0, None)
            a("s_branch S_loop")
            a.label("S_exit")
            for k in range(4): self.issueWO(k)
            for k in range(8):
                a(f"s_waitcnt vmcnt({11-k})")
                self.pv(k, 0)
            a("s_branch S_fin")
        else:
            for k in range(8):
                a(f"s_waitcnt vmcnt({7-k})")
                self.pv(k, 0)
            self.stamp_dyn()
            a.label("S_next")
            self.claim_check("S_exit0")
            for k in range(8): self.issueK(k, 0, None if k < self.bw else self.bw)
            for k in range(8): self.issueV(k, 0, None if k + 8 < self.bw else self.bw)
            a("s_branch S_loop")
        a.label("S_exit0")
        for k in range(4): self.issueWO(k)
        a.label("S_fin")
        a.settle()
        self.xred("v_add_f32", 27, 24, 16); self.xred("v_add_f32", 27, 24, 32)
        a("s_lshl_b32 s28, s3, 11"); a(f"s_add_u32 s28, s28, {MRG}"); a("v_add_u32 v23, s28, v18")
        a("ds_write_b128 v23, v[64:67]"); a("ds_write_b128 v23, v[68:71] offset:1024")
        a("s_lshl_b32 s28, s3, 7"); a(f"s_add_u32 s28, s28, {MRGS}"); a("v_lshl_add_u32 v23, v1, 3, s28")
        a("s_mov_b64 exec, 0xffff")
        a("ds_write_b64 v23, v[26:27]")
        a("s_mov_b64 exec, -1")
        self.lds_signal(F_SD)
        self.stamp(10)
        a("s_cmp_eq_u32 s3, 0"); a("s_cbranch_scc1 S_tail")
        a("s_waitcnt vmcnt(0)")
        self.lds_signal(F_WO)
        a("s_endpgm")
        a.label("S_tail")
        a("s_setprio 3")
        self.tail()

    def issueK(self, k, slot, win):
        a = self.a
        if win: a(f"s_waitcnt vmcnt({win-1})")
        a(f"s_add_u32 m0, s47, {slot*8192 + k*1024}")
        a(f"buffer_load_dwordx4 v{224+k}, s[4:7], s30 offen {self.nt} lds")
    def issueV(self, k, slot, win):
        a = self.a
        if win: a(f"s_waitcnt vmcnt({win-1})")
        r, half = divmod(k, 2)
        a(f"buffer_load_dwordx4 {vr(128 + 32*slot + 4*k)}, v{93 + (r >> 1)}, s[8:11], s30 offen offset:{(r & 1)*2048 + half*256} {self.nt}")
    def issueWO(self, k):
        a = self.a
        a(f"s_add_u32 m0, s43, {1024*k}")
        a(f"s_add_u32 s28, s42, {2*k*896}")
        a(f"buffer_load_dwordx4 v109, s[64:67], s28 offen {self.nt} lds")
    def claim(self):
        a = self.a
        a("s_mov_b64 s[50:51], 1")
        a(f"s_atomic_add_x2 s[50:51], s[12:13], s49 offset:{CNT} glc")
    def claim_check(self, exit_label):
        a = self.a
        L = a.newlabel("CK"); OK = a.newlabel("CO")
        a(f"s_mov_b32 s33, {SPIN//8}")
        a.label(L)
        a("s_waitcnt lgkmcnt(0)")
        a("s_cmp_eq_u32 s51, s16"); a(f"s_cbranch_scc1 {OK}")
        a("s_sub_u32 s33, s33, 1"); a(f"s_cbranch_scc1 {exit_label}")
        self.claim()
        a(f"s_branch {L}")
        a.label(OK)
        a("s_cmp_ge_u32 s50, 128"); a(f"s_cbranch_scc1 {exit_label}")
        self.unit_off("s50")
    def unit_off(self, sidx):
        a = self.a
        a(f"s_mul_i32 s30, {sidx}, 37"); a("s_and_b32 s30, s30, 127"); a("s_lshl_b32 s30, s30, 15"); a("s_add_u32 s30, s30, s48")
    def kv_setup(self):
        a = self.a
        a("v_lshrrev_b32 v95, 5, v1"); a("v_lshlrev_b32 v94, 2, v95"); a("v_and_b32 v92, 31, v1"); a("v_xor_b32 v92, v92, v94")
        a("v_lshlrev_b32 v92, 4, v92"); a("v_lshl_add_u32 v92, v95, 9, v92")
        for k in range(8):
            a(f"v_xor_b32 v{224+k}, {(8*(k & 1) + (k >> 1))*16 + k*1024}, v92")
        a("s_lshl_b32 s47, s3, 14"); a("s_add_u32 s47, s47, 16384")
        a("v_and_b32 v94, 3, v1"); a("v_lshlrev_b32 v94, 2, v94"); a("v_bfe_u32 v95, v1, 2, 2"); a("v_add_u32 v94, v94, v95")
        a("v_lshlrev_b32 v92, 9, v94")
        a("v_lshrrev_b32 v95, 4, v1"); a("v_and_b32 v94, 15, v1"); a("v_xor_b32 v93, v95, v94"); a("v_lshl_add_u32 v92, v93, 4, v92")
        a("v_add_u32 v92, s47, v92")
        for t in range(4): a(f"v_xor_b32 v{232+t}, {64*t}, v92")
        a("v_lshlrev_b32 v93, 9, v95"); a("v_lshl_add_u32 v93, v94, 4, v93")
        a("v_add_u32 v94, 0x1000, v93")
        a("s_bfe_u32 s45, s2, 0x30003")
        a("s_lshr_b32 s48, s2, 6"); a("s_add_u32 s48, s48, s2"); a("s_add_u32 s48, s48, s3"); a("s_and_b32 s48, s48, 3")
        a("s_lshl_b32 s49, s45, 2"); a("s_add_u32 s49, s49, s48"); a("s_lshl_b32 s49, s49, 7")
        a("s_lshl_b32 s45, s45, 22")
        a(f"s_mov_b32 s46, {CEXP:#x}")
        a("s_add_u32 s4, s20, s45"); a("s_addc_u32 s5, s21, 0"); a(f"s_mov_b32 s6, {4<<20}"); a("s_mov_b32 s7, 0x00020000")
        a("s_add_u32 s8, s22, s45"); a("s_addc_u32 s9, s23, 0"); a(f"s_mov_b32 s10, {4<<20}"); a("s_mov_b32 s11, 0x00020000")
        self.srd(64, 24, 4096*896)
        a("s_lshl_b32 s48, s48, 13")
        a("s_mov_b32 s52, 16")
        a("v_mov_b32 v26, 0xf149f2ca"); a("v_mov_b32 v27, 0")
        for r in range(8): a(f"v_mov_b32 v{64+r}, 0")
        self.tail_addrs()
    def kv_prologue(self, sched, go):
        a = self.a
        self.unit_off("s44")
        for i in range(32):
            win = self.D
            for upto, w in sched:
                if i < upto: win = w; break
            if i < win: win = None
            if i == go: self.lds_signal(F_GO)
            if i == 16:
                a("s_add_u32 s44, s44, 24"); self.unit_off("s44")
            u, k = divmod(i, 16)
            if k < 8: self.issueK(k, 1 - u, win)
            else: self.issueV(k - 8, 1 - u, win)
    def q_ops(self):
        a = self.a
        a("v_bfe_u32 v23, v1, 3, 1"); a("v_lshlrev_b32 v23, 9, v23"); a("v_lshrrev_b32 v24, 4, v1"); a("v_lshl_add_u32 v23, v24, 4, v23")
        a(f"v_add_u32 v23, {QA}, v23")
        self.lds_wait(F_QA, 4, sleep=1)
        for t in range(8): a(f"ds_read_b128 {vr(32+4*t)}, v23 offset:{64*t}")
        a("s_waitcnt lgkmcnt(0)")
    def pv(self, k, slot):
        r, half = divmod(k, 2)
        self.a(f"v_mfma_f32_16x16x32_bf16 {vr(64+4*half)}, {vr(128+32*slot+4*k)}, {vr(76+4*r)}, {vr(64+4*half)}")
    def unit_qk(self, slot, claim=False):
        a = self.a; M, Lr = 26, 27
        for t in range(8):
            a(f"ds_read_b128 {vr(192+4*t)}, v{232+(t & 3)} offset:{slot*8192 + (t >> 2)*256}")
        for t in range(8):
            a(f"s_waitcnt lgkmcnt({7-t})")
            a(f"v_mfma_f32_16x16x32_bf16 v[72:75], {vr(192+4*t)}, {vr(32+4*t)}, {'0' if t == 0 else 'v[72:75]'}")
        if claim: self.claim()
        if self.round_s:
            a("v_cvt_pk_bf16_f32 v28, v72, v73"); a("v_cvt_pk_bf16_f32 v29, v74, v75")
            a("v_lshlrev_b32 v72, 16, v28"); a("v_and_b32 v73, 0xffff0000, v28")
            a("v_lshlrev_b32 v74, 16, v29"); a("v_and_b32 v75, 0xffff0000, v29")
        a("v_max3_f32 v28, v72, v73, v74"); a("v_max_f32 v28, v28, v75")
        self.xred("v_max_f32", 28, 29, 16); self.xred("v_max_f32", 28, 29, 32)
        a("v_mul_f32 v28, s46, v28")
        a(f"v_max_f32 v28, v28, v{M}")
        a(f"v_sub_f32 v30, v{M}, v28"); a("v_exp_f32 v30, v30")
        a(f"v_mov_b32 v{M}, v28")
        for r in range(4): a(f"v_fma_f32 v{72+r}, v{72+r}, s46, -v{M}")
        for r in range(4): a(f"v_exp_f32 v{72+r}, v{72+r}")
        for r in range(8): a(f"v_mul_f32 v{64+r}, v{64+r}, v30")
        a(f"v_fma_f32 v{Lr}, v{Lr}, v30, v72")
        for r in range(1, 4): a(f"v_add_f32 v{Lr}, v{Lr}, v{72+r}")
        a("v_cvt_pk_bf16_f32 v28, v72, v73"); a("v_cvt_pk_bf16_f32 v29, v74, v75")
        for r in range(4):
            for w in range(4):
                a(f"v_perm_b32 v{76+4*r+w}, v{28+r//2}, v{28+r//2}, v{(8 if r & 1 else 4)+w}")

def psched(x): return tuple(tuple(int(v) for v in p.split(':')) for p in x.split(',') if p)
if __name__ == "__main__":
    import argparse
    ap = argparse.ArgumentParser()
    ap.add_argument("out"); ap.add_argument("--nt", default="nt")
    for k, v in (("D", 8), ("DB", 8), ("goP", 12), ("goA", 6), ("wqd", 1), ("p2d", 4), ("cpat", 10), ("pf", 1), ("ldack", 0), ("cpos", 0), ("early", 0), ("lazy", 20), ("goQ", 10), ("bw", 16)):
        ap.add_argument("--" + k, type=int, default=v)
    ap.add_argument("--sched", default="4:1,12:4"); ap.add_argument("--schedA", default="6:4"); ap.add_argument("--schedQ", default="10:4")
    ap.add_argument("--abl", default=""); ap.add_argument("--nostamps", action="store_true"); ap.add_argument("--diag", type=int, default=None)
    x = ap.parse_args()
    g = G(nt=x.nt, D=x.D, DB=x.DB, stamps=not x.nostamps, diag=x.diag, sched=psched(x.sched), schedA=psched(x.schedA), goP=x.goP, goA=x.goA, wqd=x.wqd, p2d=x.p2d, cpat=x.cpat, pf=x.pf, ldack=x.ldack, cpos=x.cpos, early=x.early, abl=x.abl, lazy=x.lazy, schedQ=psched(x.schedQ), goQ=x.goQ, bw=x.bw)
    open(x.out, "w").write(g.build())
```

```python
import sys
from asmlib import Asm, vr, sr
NAME = "concat_heads__gqa_block_cached__compressed_kv_cla__decode"

WS_STAMP = 0x1000
QREC = 0x20000; QABS = 0x40000; HQ = 0x48000; HL = 0x4A000; LST = 0x4C000
CNT = 0x4E000; CTX = 0x50000; OST = 0x60000; OREC = 0x70000; OUTP = 0xB0000; LREC = 0x100000
WS_BYTES = 0x300000
TILE = 0
SC = 131072
PS = SC
RED8 = SC
RED2 = SC + 8192
REDL = SC + 8192
MRG = SC + 16384
PB = SC + 24576
MX = SC + 28672
LB = SC + 29184
QA = SC + 29696
MRGS = SC + 30720
CT = SC + 31232
CT2 = SC + 31744
FLG = SC + 32000
(F_C, F_QA, F_T0, F_T1, F_T2, F_T3, F_X0, F_X1, F_1a, F_1b, F_2, F_3, F_SD, F_R, F_CT, F_WO, F_LD, F_H) = [FLG + 4*i for i in range(18)]
F_GO = F_R
WST = SC + 31872
LDS_BYTES = 163840
CEXP = 0x3DB8AA3B
SPIN = 200000
NSTATIC = 48

class G:
    def __init__(self, nt="nt", D=8, DB=8, stamps=True, round_s=True, diag=None, sched=((6, 1), (12, 3)), schedA=((4, 2),), goP=12, goA=4, wqd=1, p2d=4, cpat=10, pf=1, ldack=0, cpos=1, early=0, abl='', lazy=6, schedQ=(), goQ=0, bw=16):
        self.schedQ = schedQ; self.goQ = goQ; self.bw = bw
        self.cpos = cpos; self.early = early; self.abl = abl; self.lazy = lazy
        self.pf = pf; self.ldack = ldack
        self.diag = diag; self.sched = sched; self.schedA = schedA; self.goP = goP; self.goA = goA; self.wqd = wqd; self.p2d = p2d; self.cpat = cpat
        self.a = Asm(); self.nt = nt; self.D = D; self.DB = DB; self.stamps = stamps; self.round_s = round_s
        self.ccount = 0
    def stamp(self, i):
        if not self.stamps: return
        a = self.a
        a("s_memrealtime vcc")
        a("s_waitcnt lgkmcnt(0)")
        a(f"v_writelane_b32 v12, vcc_lo, {i}")
    def stamp_dyn(self):
        if not self.stamps: return
        a = self.a
        a("s_memrealtime vcc")
        a("s_mov_b32 m0, s52")
        a("s_waitcnt lgkmcnt(0)")
        a("v_writelane_b32 v12, vcc_lo, m0")
        a("s_add_u32 s52, s52, 1")
    def srd(self, d, p, nbytes, off=None):
        a = self.a
        if off is None:
            a(f"s_mov_b32 s{d}, s{p}"); a(f"s_mov_b32 s{d+1}, s{p+1}")
        else:
            a(f"s_add_u32 s{d}, s{p}, {off}"); a(f"s_addc_u32 s{d+1}, s{p+1}, 0")
        a(f"s_mov_b32 s{d+2}, {nbytes}"); a(f"s_mov_b32 s{d+3}, 0x00020000")
    def lds_signal(self, addr):
        a = self.a
        a("s_waitcnt lgkmcnt(0)")
        a("s_mov_b64 exec, 1")
        a(f"ds_add_u32 v2, v3 offset:{addr - FLG}")
        a("s_mov_b64 exec, -1")
    def lds_signal_w(self, addr):
        a = self.a
        a("s_lshl_b32 s32, s3, 2"); a("v_add_u32 v13, s32, v2")
        a("s_mov_b64 exec, 1")
        a(f"ds_add_u32 v13, v3 offset:{addr - FLG}")
        a("s_mov_b64 exec, -1")
    def lds_wait(self, addr, target, sleep=0, perwave=False):
        a = self.a
        av = 2
        if perwave:
            a("s_lshl_b32 s32, s3, 2"); a("v_add_u32 v15, s32, v2"); av = 15
        L = a.newlabel("LW"); E = a.newlabel("LE")
        a(f"s_mov_b32 s33, {SPIN}")
        a.label(L)
        a(f"ds_read_b32 v13, v{av} offset:{addr - FLG}")
        a("s_sub_u32 s33, s33, 1")
        a(f"s_cbranch_scc1 {E}")
        a("s_waitcnt lgkmcnt(0)")
        a("v_readfirstlane_b32 s32, v13")
        a(f"s_cmp_ge_u32 s32, {target}")
        if sleep:
            a(f"s_cbranch_scc1 {E}")
            a(f"s_sleep {sleep}")
            a(f"s_branch {L}")
        else:
            a(f"s_cbranch_scc0 {L}")
        a.label(E)
        a("s_waitcnt lgkmcnt(0)")
    def csync(self):
        self.ccount += 4
        self.lds_signal(F_C)
        self.lds_wait(F_C, self.ccount)
    def spoll(self, nx16, soff, imm, mask, want, lazy=0, sleep=0):
        a = self.a
        L = a.newlabel("SP"); E = a.newlabel("SE")
        a(f"s_mov_b32 s33, {SPIN//8}")
        a.label(L)
        for i in range(nx16):
            a(f"s_load_dwordx16 s[{36+16*i}:{51+16*i}], s[12:13], {soff} offset:{imm+64*i} glc")
        a("s_sub_u32 s33, s33, 1")
        a(f"s_cbranch_scc1 {E}")
        a("s_waitcnt lgkmcnt(0)")
        if lazy:
            K = a.newlabel("SK")
            a(f"s_cmp_eq_u32 s36, {want}"); a(f"s_cbranch_scc1 {K}")
            a(f"s_cmp_eq_u32 s43, {want}"); a(f"s_cbranch_scc1 {K}")
            a(f"s_sleep {lazy}"); a(f"s_branch {L}")
            a.label(K)
        n = 8 * nx16
        a("s_and_b64 s[28:29], s[36:37], s[38:39]")
        a("s_or_b64 s[30:31], s[36:37], s[38:39]")
        for i in range(2, n):
            a(f"s_and_b64 s[28:29], s[28:29], s[{36+2*i}:{37+2*i}]")
            a(f"s_or_b64 s[30:31], s[30:31], s[{36+2*i}:{37+2*i}]")
        a("s_and_b32 s28, s28, s29")
        a("s_or_b32 s30, s30, s31")
        a(f"s_xor_b32 s28, s28, {want}")
        a(f"s_xor_b32 s30, s30, {want}")
        a("s_or_b32 s28, s28, s30")
        a(f"s_and_b32 s28, s28, {mask}")
        if sleep:
            a(f"s_cbranch_scc0 {E}"); a(f"s_sleep {sleep}"); a(f"s_branch {L}")
        else:
            a(f"s_cbranch_scc1 {L}")
        a.label(E)
        a("s_waitcnt lgkmcnt(0)")
    def vcheck(self, regs, mask, want, acc=14, first=True):
        a = self.a
        tmp = acc + 1
        a(f"v_xor_b32 v{tmp}, {want}, v{regs[0]}")
        for r in regs[1:]:
            a(f"v_bitop3_b32 v{tmp}, v{r}, {want}, v{tmp} bitop3:0xbe")
        if first:
            a(f"v_and_b32 v{acc}, {mask}, v{tmp}")
        else:
            a(f"v_and_b32 v{tmp}, {mask}, v{tmp}")
            a(f"v_or_b32 v{acc}, v{acc}, v{tmp}")
    def allred16(self, op, v):
        for n in (8, 4, 2, 1):
            self.a(f"{op} v{v}, v{v}, v{v} row_ror:{n} row_mask:0xf bank_mask:0xf")
    def xred(self, op, v, t, which):
        a = self.a
        a(f"v_mov_b32 v{t}, v{v}")
        a(f"v_permlane{which}_swap_b32 v{v}, v{t}")
        a(f"{op} v{v}, v{v}, v{t}")
    def tagpack(self, d, x0, x1):
        a = self.a
        a(f"v_perm_b32 v{d}, v{x1}, v{x0}, v16")
        a(f"v_add_u32 v{d}, s19, v{d}")
        a(f"v_and_or_b32 v{d}, v{d}, v17, s18")
    def red8(self, dst):
        a = self.a
        for cw in range(4):
            for rho in range(2):
                a(f"ds_read_b32 v{20+2*cw+rho}, v18 offset:{cw*1024 + rho*640}")
        a("s_waitcnt lgkmcnt(0)")
        a("v_add_f32 v20, v20, v21"); a("v_add_f32 v22, v22, v23"); a("v_add_f32 v24, v24, v25"); a("v_add_f32 v26, v26, v27")
        a("v_add_f32 v20, v20, v22"); a("v_add_f32 v24, v24, v26")
        a(f"v_add_f32 v{dst}, v20, v24")
    def w16_loads(self, ptr, rowfn, lanerows, s_rg, s_cg):
        a = self.a
        self.srd(4, ptr, 4096*896)
        a("v_lshrrev_b32 v20, 4, v1")
        a(f"v_mul_u32_u24 v20, {lanerows*896}, v20")
        a("v_and_b32 v21, 15, v1")
        a("v_lshl_add_u32 v20, v21, 4, v20")
        a(f"s_cmp_eq_u32 {s_cg}, 3")
        a("s_cselect_b32 s28, 8, 16")
        a("v_cmp_le_u32 vcc, s28, v21")
        a("v_mov_b32 v21, 0x7ff00000")
        a("v_cndmask_b32 v20, v20, v21, vcc")
        a(f"s_mul_i32 s28, {s_rg}, {64*896}")
        a(f"s_lshl_b32 s29, {s_cg}, 8")
        a("s_add_u32 s28, s28, s29")
        for t in range(16):
            a(f"s_add_u32 s29, s28, {rowfn(t)*896}")
            a(f"buffer_load_dwordx4 {vr(192+4*t)}, v20, s[4:7], s29 offen {self.nt}")
    def publish_out(self, P, acc, s_rg, s_cg):
        a = self.a
        for r in range(4):
            a(f"v_and_or_b32 v{20+r}, v{acc+r}, v19, s17")
        a("v_lshrrev_b32 v24, 4, v1"); a("v_lshlrev_b32 v24, 7, v24")
        a("v_and_b32 v25, 7, v1"); a("v_lshl_add_u32 v24, v25, 4, v24")
        a(f"s_lshl_b32 s28, {s_rg}, 11"); a(f"s_lshl_b32 s29, {s_cg}, 9"); a("s_add_u32 s28, s28, s29")
        a(f"s_add_u32 s28, s28, {OUTP + P*131072}")
        a("s_mov_b32 exec_lo, 0x00ff00ff")
        a(f"s_cmp_eq_u32 {s_cg}, 3")
        a("s_cselect_b32 exec_hi, 0, 0x00ff00ff")
        a(f"buffer_store_dwordx4 v[20:23], v24, s[12:15], s28 offen sc1")
        a("s_mov_b64 exec, -1")
    def reduce_out(self, P, s_n):
        a = self.a
        L = a.newlabel("RO"); E = a.newlabel("RE")
        a("v_lshlrev_b32 v24, 11, v1")
        a(f"s_lshl_b32 s28, {s_n}, 4"); a(f"s_add_u32 s28, s28, {OUTP + P*131072}")
        a(f"s_mov_b32 s33, {SPIN//8}")
        a.label(L)
        a("buffer_load_dwordx4 v[20:23], v24, s[12:15], s28 offen sc1")
        a("s_sub_u32 s33, s33, 1")
        a(f"s_cbranch_scc1 {E}")
        a("s_waitcnt vmcnt(0)")
        self.vcheck([20, 21, 22, 23], "0xff", "s17")
        a("v_cmp_ne_u32 vcc, 0, v14")
        a(f"s_cbranch_vccnz {L}")
        a.label(E)
        a("s_waitcnt vmcnt(0)")
        for r in range(4): a(f"v_and_b32 v{20+r}, v19, v{20+r}")
        a("v_permlane32_swap_b32 v20, v21"); a("v_permlane32_swap_b32 v22, v23")
        a("v_add_f32 v20, v20, v21"); a("v_add_f32 v22, v22, v23")
        a("v_permlane16_swap_b32 v20, v22")
        a("v_add_f32 v20, v20, v22")
        self.allred16("v_add_f32", 20)
        a("v_cvt_pk_bf16_f32 v20, v20, v20")
        a("v_lshrrev_b32 v21, 4, v1")
        a("v_lshlrev_b32 v22, 1, v21"); a("v_and_b32 v22, 2, v22"); a("v_lshrrev_b32 v21, 1, v21"); a("v_or_b32 v21, v21, v22")
        a("v_lshlrev_b32 v21, 4, v21")
        a(f"s_lshr_b32 s28, {s_n}, 3"); a("s_lshl_b32 s28, s28, 5"); a(f"s_and_b32 s29, {s_n}, 7"); a("s_add_u32 s28, s28, s29")
        a("s_lshl_b32 s28, s28, 1"); a(f"s_add_u32 s28, s28, {(0 if P == 0 else 448)*2}")
        self.srd(8, 26, 1792)
        a("s_mov_b32 exec_lo, 0x00010001"); a("s_mov_b32 exec_hi, 0x00010001")
        a("buffer_store_short v20, v21, s[8:11], s28 offen")
        a("s_mov_b64 exec, -1")
    def diag_spin(self, idx):
        a = self.a
        L = a.newlabel("DG")
        a("v_readlane_b32 s36, v12, 0"); a(f"v_readlane_b32 s37, v12, {idx}")
        a("s_cmp_eq_u32 s37, 0"); a("s_cselect_b32 s37, s36, s37")
        a("s_sub_u32 s37, s37, s36"); a("s_mul_i32 s37, s37, 10"); a("s_add_u32 s37, s37, 20000")
        a.label(L)
        a("s_sleep 8")
        a("s_memrealtime vcc"); a("s_waitcnt lgkmcnt(0)")
        a("s_sub_u32 s38, vcc_lo, s36"); a("s_cmp_lt_u32 s38, s37"); a(f"s_cbranch_scc1 {L}")
    def dump_stamps(self, slot):
        if not self.stamps: return
        a = self.a
        a("v_lshlrev_b32 v20, 2, v1")
        a("s_lshl_b32 s28, s2, 8"); a(f"s_add_u32 s28, s28, {WS_STAMP + (0, 128, 192)[slot]}")
        a("s_mov_b32 exec_hi, 0"); a("s_mov_b32 exec_lo, " + ("-1" if slot == 0 else "0xffff"))
        a("buffer_store_dword v12, v20, s[12:15], s28 offen")
        a("s_mov_b64 exec, -1")

    def build(self):
        a = self.a
        a.raw(f"; @launch grid=(256,1,1) block=(512,1,1) lds={LDS_BYTES}")
        a.raw('.amdgcn_target "amdgcn-amd-amdhsa--gfx950"')
        a.raw(".text"); a.raw(f".globl {NAME}_kernel"); a.raw(".p2align 8"); a.raw(f".type {NAME}_kernel,@function"); a.raw(f"{NAME}_kernel:")
        a("s_cmp_ge_u32 s2, 256"); a("s_cbranch_scc1 L_end")
        if self.stamps: a("s_memrealtime s[98:99]")
        a("s_load_dwordx16 s[36:51], s[0:1], 0")
        a("s_load_dwordx8 s[52:59], s[0:1], 64")
        a("s_load_dwordx4 s[60:63], s[0:1], 96")
        a("v_and_b32 v1, 63, v0")
        a("v_lshrrev_b32 v13, 6, v0")
        a("v_mov_b32 v12, 0")
        a("v_readfirstlane_b32 s3, v13")
        a(f"v_mov_b32 v2, {FLG}")
        a("v_mov_b32 v3, 1")
        a("s_lshr_b32 s100, s2, 5"); a("s_lshl_b32 s100, s100, 3"); a("s_and_b32 s28, s2, 7"); a("s_add_u32 s100, s100, s28")
        a("s_bfe_u32 s101, s2, 0x20003")
        if self.pf:
            a("s_cmp_lg_u32 s3, 3"); a("s_cbranch_scc1 L_nopf")
            a("s_getpc_b64 s[4:5]")
            a("s_and_b32 s4, s4, 0xffffff00")
            a("s_mov_b32 s6, CODE_BYTES"); a("s_mov_b32 s7, 0x00020000")
            a("s_lshr_b32 s28, s2, 3"); a("s_and_b32 s28, s28, 7"); a("s_lshl_b32 s28, s28, 13")
            a("v_lshlrev_b32 v14, 7, v1")
            a("buffer_load_dword v255, v14, s[4:7], s28 offen")
            a.label("L_nopf")
        a("s_waitcnt lgkmcnt(0)")
        self.srd(12, 62, WS_BYTES)
        if self.stamps: a("v_writelane_b32 v12, s98, 0")
        self.stamp(9)
        a("s_load_dword s16, s[12:13], 0")
        a("s_mov_b64 s[26:27], s[58:59]")
        a("s_cmp_lt_u32 s3, 4"); a("s_cbranch_scc1 L_S")
        self.cwave()
        a.label("L_S")
        self.swave()
        a.label("L_end"); a("s_endpgm")
        a.raw("L_codeend:")
        a.raw(f".set CODE_BYTES, L_codeend - {NAME}_kernel")
        a.raw('.section .rodata,"a"'); a.raw(".p2align 6"); a.raw(f".amdhsa_kernel {NAME}_kernel")
        a.raw("  .amdhsa_next_free_vgpr 256"); a.raw("  .amdhsa_next_free_sgpr 102"); a.raw("  .amdhsa_accum_offset 256")
        a.raw("  .amdhsa_group_segment_fixed_size 0"); a.raw("  .amdhsa_kernarg_size 112"); a.raw("  .amdhsa_user_sgpr_count 2")
        a.raw("  .amdhsa_user_sgpr_kernarg_segment_ptr 1"); a.raw("  .amdhsa_system_sgpr_workgroup_id_x 1"); a.raw(".end_amdhsa_kernel")
        return a.text()

    def consts(self):
        a = self.a
        a("v_and_b32 v13, 1, v1")
        a("v_cmp_eq_u32 vcc, 1, v13")
        a("v_mov_b32 v14, 0x0c0c0100"); a("v_mov_b32 v15, 0x01000c0c")
        a("v_cndmask_b32 v14, v14, v15, vcc")
        a("v_mov_b32 v31, 0x0c0c0302"); a("v_mov_b32 v15, 0x03020c0c")
        a("v_cndmask_b32 v15, v31, v15, vcc")
        a("v_bfe_u32 v13, v1, 1, 2")
        a("v_mov_b32 v31, 0x0c0c0c0c")
        for w in range(4):
            a(f"v_cmp_eq_u32 vcc, {w}, v13")
            a(f"v_cndmask_b32 v{4+w}, v31, v14, vcc")
            a(f"v_cndmask_b32 v{8+w}, v31, v15, vcc")
        a("v_mov_b32 v16, 0x07060302")
        a("v_mov_b32 v17, 0xfffefffe")
        a("v_mov_b32 v19, 0xffffff00")
    def tags(self):
        a = self.a
        a("s_waitcnt lgkmcnt(0)")
        a("s_add_u32 s16, s16, 0x01010101")
        a("s_and_b32 s17, s16, 0xff")
        a("s_and_b32 s18, s16, 1")
        a("s_cselect_b32 s18, 0x00010001, 0")
        a("s_cselect_b32 s19, 0, 0x00010001")
    def swz(self, vd, vk, t):
        a = self.a
        a(f"v_and_b32 v{vd}, 7, v{vk}"); a(f"v_lshlrev_b32 v{vd}, 1, v{vd}")
        a(f"v_lshrrev_b32 v{t}, 3, v{vk}"); a(f"v_or_b32 v{vd}, v{vd}, v{t}")
    def row_addrs(self):
        a = self.a
        a("s_lshl_b32 s34, s3, 9")
        a("v_and_b32 v20, 15, v1"); self.swz(21, 20, 22)
        a("v_lshrrev_b32 v22, 4, v1"); a("v_lshlrev_b32 v22, 1, v22")
        a("v_xor_b32 v21, v21, v22"); a("v_lshlrev_b32 v21, 4, v21")
        a("v_lshl_add_u32 v21, v20, 11, v21"); a("v_add_u32 v21, s34, v21")
        for v in range(4):
            x = (8*(v >> 1) + (v & 1)) * 16
            a(f"v_xor_b32 v{112+v}, {x}, v21")
            a(f"v_add_u32 v{116+v}, 0x10000, v{112+v}")
    def row_read(self, dst, kb, t):
        u = t >> 1; v = (u & 1) * 2 + (t & 1)
        base = (112 if kb < 2 else 116) + v
        self.a(f"ds_read_b128 {vr(dst)}, v{base} offset:{(kb & 1)*32768 + (u >> 1)*256}")
    def tr_addrs(self):
        a = self.a
        a("s_lshl_b32 s34, s3, 9")
        a("v_lshrrev_b32 v20, 2, v1"); self.swz(21, 20, 22)
        a("v_bfe_u32 v22, v1, 1, 1"); a("v_xor_b32 v21, v21, v22"); a("v_lshlrev_b32 v21, 4, v21")
        a("v_and_b32 v22, 1, v1"); a("v_lshl_add_u32 v21, v22, 3, v21")
        a("v_lshl_add_u32 v21, v20, 11, v21"); a("v_add_u32 v21, s34, v21")
        for c in range(8):
            a(f"v_xor_b32 v{120+c}, {c*32}, v21")
    def tr_read(self, dst, cb, half):
        a = self.a
        base = 120 + (cb & 7)
        if half:
            t = 28 + (cb & 3)
            a(f"v_add_u32 v{t}, 0x10000, v{base}"); base = t
        a(f"ds_read_b64_tr_b16 v[{dst}:{dst+1}], v{base} offset:{(cb >> 3)*256}")
        a(f"ds_read_b64_tr_b16 v[{dst+2}:{dst+3}], v{base} offset:{(cb >> 3)*256 + 32768}")
    def qabs_gather(self, t3=False):
        a = self.a
        L = a.newlabel("QB"); E = a.newlabel("QBE")
        a("v_and_b32 v30, 15, v1"); a("v_lshlrev_b32 v30, 6, v30"); a("v_lshrrev_b32 v31, 4, v1"); a("v_lshl_add_u32 v30, v31, 4, v30")
        a("v_add_u32 v31, 0x1000, v30")
        a("s_lshl_b32 s35, s3, 13"); a(f"s_add_u32 s35, s35, {QABS}")
        def lds():
            for t in range(8):
                a(f"buffer_load_dwordx4 {vr(32+4*t)}, v{30+(t>>2)}, s[12:15], s35 offen offset:{1024*(t&3)} sc1")
        lds()
        if t3:
            a("s_waitcnt vmcnt(8)")
            self.lds_signal(F_T3)
        a(f"s_mov_b32 s33, {SPIN//8}")
        a.label(L)
        a("s_waitcnt vmcnt(0)")
        self.vcheck(list(range(32, 64)), "1", "s18")
        a("v_cmp_ne_u32 vcc, 0, v14")
        a(f"s_cbranch_vccz {E}")
        a("s_sub_u32 s33, s33, 1")
        a(f"s_cbranch_scc1 {E}")
        lds()
        a(f"s_branch {L}")
        a.label(E)
    def exch(self, tile, mid=None):
        a = self.a
        if mid == "main": return self.exch_main(tile)
        a("v_lshlrev_b32 v24, 4, v1"); a(f"v_add_u32 v24, {PS + tile*12288}, v24")
        a("s_mul_i32 s34, s3, 3072"); a("v_add_u32 v25, s34, v24")
        a("v_and_b32 v27, 15, v1"); a("v_lshlrev_b32 v27, 5, v27"); a(f"v_add_u32 v27, {MX}, v27")
        a("s_lshl_b32 s34, s3, 2"); a("v_add_u32 v28, s34, v27")
        a("s_lshl_b32 s34, s3, 9"); a(f"s_add_u32 s34, s34, {PB + tile*2048}"); a("v_lshl_add_u32 v29, v1, 3, s34")
    def exch_main(self, tile):
        a = self.a
        a(f"s_mov_b32 s35, {CEXP:#x}")
        J = a.newlabel("XJ"); Ls = [a.newlabel("XV") for _ in range(4)]
        a.settle(8)
        for w in range(3):
            a(f"s_cmp_eq_u32 s3, {w}"); a(f"s_cbranch_scc1 {Ls[w]}")
        for w in (3, 0, 1, 2):
            a.label(Ls[w])
            for kb in range(4):
                if kb != w:
                    a(f"ds_write_b128 v24, {vr(96+4*kb)} offset:{kb*3072 + ((w-kb-1) & 3)*1024}")
            for r in range(4): a(f"v_mov_b32 v{20+r}, v{96+4*w+r}")
            if w != 2: a(f"s_branch {J}")
        a.label(J)
        a("s_waitcnt lgkmcnt(0)"); a("s_barrier")
        for j in range(3): a(f"ds_read_b128 {vr(96+4*j)}, v25 offset:{1024*j}")
        a("s_waitcnt lgkmcnt(0)")
        for r in range(4):
            a(f"v_add_f32 v{20+r}, v{20+r}, v{96+r}"); a(f"v_add_f32 v{100+r}, v{100+r}, v{104+r}")
        for r in range(4): a(f"v_add_f32 v{20+r}, v{20+r}, v{100+r}")
        a("v_max3_f32 v26, v20, v21, v22"); a("v_max_f32 v26, v26, v23")
        self.xred("v_max_f32", 26, 30, 16); self.xred("v_max_f32", 26, 30, 32)
        a("s_mov_b64 exec, 0xffff")
        a(f"ds_write_b32 v28, v26 offset:{tile*16}")
        a("s_mov_b64 exec, -1")
        a("s_waitcnt lgkmcnt(0)"); a("s_barrier")
        a("ds_read_b128 v[96:99], v27"); a("ds_read_b128 v[100:103], v27 offset:16")
        a("s_waitcnt lgkmcnt(0)")
        a("v_max3_f32 v26, v96, v97, v98"); a("v_max3_f32 v30, v99, v100, v101"); a("v_max3_f32 v26, v26, v102, v103"); a("v_max_f32 v26, v26, v30")
        a("v_mul_f32 v26, s35, v26"); a("v_and_b32 v26, v19, v26")
        for r in range(4): a(f"v_fma_f32 v{20+r}, v{20+r}, s35, -v26")
        for r in range(4): a(f"v_exp_f32 v{20+r}, v{20+r}")
        a("v_cvt_pk_bf16_f32 v96, v20, v21"); a("v_cvt_pk_bf16_f32 v97, v22, v23")
        a("ds_write_b64 v29, v[96:97]")
        a("v_add_f32 v20, v20, v21"); a("v_add_f32 v22, v22, v23"); a("v_add_f32 v20, v20, v22")
        self.xred("v_add_f32", 20, 30, 16); self.xred("v_add_f32", 20, 30, 32)
        a("s_mov_b64 exec, 0xffff")
        a(f"ds_write_b32 v28, v20 offset:{LB - MX + tile*16}")
        a("s_mov_b64 exec, -1")
        a("s_waitcnt lgkmcnt(0)"); a("s_barrier")

    def p2_stage(self, rh):
        a = self.a; nt = self.nt
        self.srd(4, 52, 8 << 20)
        a("v_lshrrev_b32 v21, 5, v1"); a("v_and_b32 v20, 31, v1"); a("v_xor_b32 v20, v20, v21"); a("v_lshlrev_b32 v20, 4, v20")
        a("v_lshl_add_u32 v20, v21, 13, v20")
        a("s_and_b32 s28, s2, 3"); a("s_lshl_b32 s28, s28, 21")
        a("s_bfe_u32 s29, s2, 0x40002"); a("s_lshl_b32 s29, s29, 9"); a("s_add_u32 s28, s28, s29")
        a("s_lshl_b32 s29, s3, 18"); a("s_add_u32 s28, s28, s29")
        if rh: a(f"s_add_u32 s28, s28, {128*8192}")
        a("s_lshl_b32 s29, s3, 14")
        for k in range(16):
            if k >= self.p2d: a(f"s_waitcnt vmcnt({self.p2d-1})")
            a(f"v_xor_b32 v21, {((2*k) & 15)*16}, v20")
            a(f"s_add_u32 m0, s29, {rh*65536 + k*1024}")
            a(f"buffer_load_dwordx4 v21, s[4:7], s28 offen {nt} lds")
            if k != 15: a(f"s_add_u32 s28, s28, {2*8192}")
            if k == self.p2d - 1:
                self.consts(); self.tags()
        a("s_lshl_b32 s28, s3, 10"); a(f"s_add_u32 s28, s28, {RED2 + rh*512}")
        a("v_add_u32 v24, s28, v1")
        a("v_and_b32 v20, 15, v1"); a("v_lshrrev_b32 v21, 4, v1"); a("v_xor_b32 v21, v21, v20")
        a("s_and_b32 s28, s3, 1"); a("s_lshl_b32 s28, s28, 3"); a("v_xor_b32 v21, s28, v21"); a("v_lshlrev_b32 v21, 4, v21")
        a("v_lshl_add_u32 v21, v20, 9, v21")
        a("s_lshr_b32 s28, s3, 1"); a("s_lshl_b32 s28, s28, 8")
        if rh: a("s_add_u32 s28, s28, 0x10000")
        a("v_add_u32 v25, s28, v21"); a("v_xor_b32 v26, 64, v25")
        a("s_bfe_u32 s34, s2, 0x40002"); a("s_lshl_b32 s34, s34, 2"); a("s_add_u32 s34, s34, s3"); a("s_lshl_b32 s34, s34, 8")
        if rh: a("s_add_u32 s34, s34, 0x8000")
        self.stamp(1)
        self.spoll(4, "s34", QREC, "0xffff", "s16")
        for i in range(32):
            a(f"s_pack_hh_b32_b16 s{36+i}, s{36+2*i}, s{37+2*i}")
        for g in range(4):
            lo = (0xffff << (16*g)) & 0xffffffff if g < 2 else 0
            hi = (0xffff << (16*(g-2))) & 0xffffffff if g >= 2 else 0
            a(f"s_mov_b32 exec_lo, {lo:#x}"); a(f"s_mov_b32 exec_hi, {hi:#x}")
            for t in range(2):
                for w in range(4):
                    a(f"v_mov_b32 v{32+4*t+w}, s{36+16*t+4*g+w}")
        a("s_mov_b64 exec, -1")
        self.stamp(2)
        a("s_waitcnt vmcnt(0)")
        a("s_barrier")
        for rb in range(8):
            for t in range(2):
                a(f"ds_read_b128 {vr(128+8*rb+4*t)}, v{25+t} offset:{8192*rb}")
        for rb in range(8):
            a(f"s_waitcnt lgkmcnt({14 - 2*rb})")
            for t in range(2):
                a(f"v_mfma_f32_16x16x32_bf16 {vr(40+4*rb)}, {vr(128+8*rb+4*t)}, {vr(32+4*t)}, {'0' if t == 0 else vr(40+4*rb)}")
        a("s_mov_b32 exec_lo, 0x00010001"); a("s_mov_b32 exec_hi, 0x00010001")
        for rb in range(8):
            a(f"ds_write_b128 v24, {vr(40+4*rb)} offset:{64*rb}")
        a("s_mov_b64 exec, -1")
    def wuv_loads(self):
        a = self.a; nt = self.nt
        self.srd(4, 20, 8 << 20)
        a("v_lshrrev_b32 v20, 3, v1"); a("v_lshlrev_b32 v20, 17, v20")
        a("v_and_b32 v21, 7, v1"); a("v_lshl_add_u32 v20, v21, 4, v20")
        a("s_and_b32 s28, s100, 3"); a("s_lshl_b32 s28, s28, 8")
        a("s_lshr_b32 s29, s3, 1"); a("s_lshl_b32 s29, s29, 7"); a("s_add_u32 s28, s28, s29")
        a("s_and_b32 s29, s3, 1"); a("s_lshl_b32 s29, s29, 3"); a("s_add_u32 s28, s28, s29")
        a("s_lshl_b32 s28, s28, 13")
        a("s_lshr_b32 s29, s100, 2"); a("s_lshl_b32 s29, s29, 9"); a("s_add_u32 s28, s28, s29")
        a("s_lshl_b32 s29, s101, 7"); a("s_add_u32 s28, s28, s29")
        for t in range(8):
            a(f"buffer_load_dwordx4 {vr(160+4*t)}, v20, s[4:7], s28 offen {nt}")
            if t != 7: a("s_add_u32 s28, s28, 8192")

    def cwave(self):
        a = self.a; nt = self.nt
        a("s_setprio 3")
        a("s_sub_u32 s3, s3, 4")
        a("s_mov_b64 s[20:21], s[54:55]")
        a("s_mov_b64 s[22:23], s[56:57]")
        a("s_cmp_ge_u32 s2, 192"); a("s_cbranch_scc1 C_B")
        a("s_cmp_ge_u32 s2, 128"); a("s_cbranch_scc1 C_A")
        a("s_cmp_lt_u32 s2, 64")
        a("s_cselect_b32 s4, s50, s42"); a("s_cselect_b32 s5, s51, s43")
        a("s_cselect_b32 s8, s46, s36"); a("s_cselect_b32 s9, s47, s37")
        a(f"s_mov_b32 s6, {448*8192}"); a("s_mov_b32 s7, 0x00020000")
        a("s_mov_b32 s10, 896"); a("s_mov_b32 s11, 0x00020000")
        a("v_lshrrev_b32 v20, 3, v1")
        a("v_mul_u32_u24 v21, 28, v20")
        a("s_mul_i32 s28, s3, 224")
        a("buffer_load_dwordx4 v[24:27], v21, s[8:11], s28 offen")
        a("buffer_load_dwordx3 v[28:30], v21, s[8:11], s28 offen offset:16")
        a(f"v_mul_u32_u24 v20, {14*8192}, v20")
        a("v_and_b32 v21, 7, v1")
        a("v_lshl_add_u32 v20, v21, 4, v20")
        a(f"s_mul_i32 s28, s3, {112*8192}")
        a("s_and_b32 s29, s2, 63"); a("s_lshl_b32 s29, s29, 7"); a("s_add_u32 s28, s28, s29")
        for t in range(14):
            if t <= self.wqd:
                K = a.newlabel("PD")
                a("s_cmp_lt_u32 s2, 64"); a(f"s_cbranch_scc1 {K}")
                a("s_waitcnt vmcnt(0)")
                a.label(K)
            a(f"buffer_load_dwordx4 {vr(192+4*t)}, v20, s[4:7], s28 offen {nt}")
            if t != 13: a("s_add_u32 s28, s28, 8192")
        self.consts()
        self.red8_addr()
        a("s_waitcnt vmcnt(14)")
        self.stamp(13)
        for t in range(14):
            for w in range(4):
                a(f"v_perm_b32 v{128+4*t+w}, v{24+t//2}, v{24+t//2}, v{(8 if t & 1 else 4)+w}")
        self.tags()
        a("s_lshl_b32 s28, s3, 10"); a(f"s_add_u32 s28, s28, {RED8}")
        a("v_lshl_add_u32 v31, v1, 4, s28")
        a("s_and_b32 s34, s16, 0xffff")
        a("v_mov_b32 v29, 0xffff0000")
        a("v_lshlrev_b32 v30, 2, v1")
        a("s_lshl_b32 s28, s2, 8"); a(f"s_add_u32 s28, s28, {QREC}"); a("s_add_u32 s29, s28, 0x8000")
        for t in range(14):
            a(f"s_waitcnt vmcnt({13 - t})")
            a(f"v_mfma_f32_16x16x32_bf16 v[96:99], {vr(192+4*t)}, {vr(128+4*t)}, {'0' if t == 0 else 'v[96:99]'}")
        a("ds_write_b128 v31, v[96:99]")
        a("s_waitcnt lgkmcnt(0)")
        a("s_barrier")
        a("s_cmp_lg_u32 s3, 0"); a("s_cbranch_scc1 C_P1done")
        self.red8(20)
        a("v_cvt_pk_bf16_f32 v20, v20, v20")
        a("v_and_or_b32 v20, v20, v29, s34")
        a("buffer_store_dword v20, v30, s[12:15], s28 offen sc1")
        a("s_cmp_ge_u32 s2, 64"); a("s_cbranch_scc1 C_P1done")
        a("buffer_store_dword v20, v30, s[12:15], s29 offen sc1")
        a.label("C_P1done")
        self.stamp(1)
        a("s_branch C_join")
        a.label("C_A")
        self.p2_stage(1)
        self.red8_addr()
        a("v_lshlrev_b32 v20, 4, v1"); a(f"v_add_u32 v20, {RED2}, v20")
        a("v_lshrrev_b32 v21, 4, v1"); a("v_lshlrev_b32 v21, 11, v21")
        a("v_bfe_u32 v30, v1, 1, 1"); a("v_lshl_add_u32 v21, v30, 10, v21")
        a("v_bfe_u32 v30, v1, 2, 2"); a("v_lshl_add_u32 v21, v30, 4, v21")
        a("v_and_b32 v30, 1, v1"); a("v_lshl_add_u32 v21, v30, 3, v21")
        a("v_lshlrev_b32 v30, 8, v1"); a("v_mov_b32 v31, s16")
        a("s_and_b32 s34, s2, 3"); a("s_lshl_b32 s34, s34, 13"); a("s_bfe_u32 s29, s2, 0x40002"); a("s_lshl_b32 s29, s29, 6")
        a("s_add_u32 s34, s34, s29"); a(f"s_add_u32 s34, s34, {QABS}")
        a("s_and_b32 s28, s2, 3"); a("s_lshl_b32 s28, s28, 6")
        a("s_bfe_u32 s29, s2, 0x40002"); a("s_lshl_b32 s29, s29, 2"); a("s_add_u32 s28, s28, s29")
        a(f"s_add_u32 s35, s28, {HQ}")
        a("s_and_b32 s28, s18, 1"); a("s_and_b32 s29, s19, 1")
        a("s_waitcnt lgkmcnt(0)")
        a("s_barrier")
        a("s_cmp_lg_u32 s3, 0"); a("s_cbranch_scc1 C_P2done")
        for dq in range(4):
            a(f"ds_read_b128 {vr(32+4*dq)}, v20 offset:{1024*dq}")
        a("s_waitcnt lgkmcnt(0)")
        for k in range(4):
            a(f"v_add_f32 v{32+k}, v{32+k}, v{36+k}"); a(f"v_add_f32 v{40+k}, v{40+k}, v{44+k}")
        for k in range(4): a(f"v_add_f32 v{32+k}, v{32+k}, v{40+k}")
        for k in range(2):
            a(f"v_cvt_pk_bf16_f32 v{33+2*k}, v{33+2*k}, v{33+2*k}")
            a(f"v_perm_b32 v{22+k}, v{33+2*k}, v{32+2*k}, v16")
            a(f"v_add_u32 v{22+k}, s29, v{22+k}")
            a(f"v_and_or_b32 v{22+k}, v{22+k}, -2, s28")
        a("buffer_store_dwordx2 v[22:23], v21, s[12:15], s34 offen sc1")
        a("s_mov_b64 exec, 0xff")
        a("buffer_store_dword v31, v30, s[12:15], s35 offen sc1")
        a("s_mov_b64 exec, -1")
        a.label("C_P2done")
        self.stamp(3)
        a("s_branch C_join")
        a.label("C_B")
        a("s_barrier")
        self.consts()
        self.red8_addr()
        self.tr_addrs(); self.row_addrs()
        self.tags()
        self.lds_wait(F_T0, 4, sleep=1)
        for cb in range(16): self.tr_read(128 + 8*cb, cb, 0)
        self.lds_signal(F_X0)
        self.stamp(1)
        self.lds_wait(F_T1, 4, sleep=1)
        for cb in range(16): self.tr_read(132 + 8*cb, cb, 1)
        self.lds_signal(F_X1)
        self.stamp(2)
        a.label("C_join")
        a.settle()
        a("s_cmp_eq_u32 s3, 1"); a("s_cbranch_scc1 C_q1")
        self.lds_signal(F_QA)
        a("s_branch C_q2")
        a.label("C_q1")
        a("s_bfe_u32 s34, s2, 0x30003"); a("s_lshl_b32 s34, s34, 3"); a("s_and_b32 s35, s2, 7"); a("s_add_u32 s34, s34, s35"); a("s_lshl_b32 s34, s34, 8")
        self.spoll(1, "s34", QREC + 0x4000 + 192, "0xffff", "s16", sleep=4)
        self.qa_issue()
        self.qa_finish()
        a.label("C_q2")
        a.settle()
        a("s_cmp_lt_u32 s2, 192"); a("s_cbranch_scc1 C_noB")
        self.battn()
        a("s_branch C_go")
        a.label("C_noB")
        self.lds_wait(F_GO, 1, sleep=4)
        a.label("C_go")
        a.settle()
        self.wuv_loads()
        a("s_cmp_lg_u32 s3, 1"); a("s_cbranch_scc1 C_noWo1")
        a("s_and_b32 s36, s100, 0x3c"); a("s_add_u32 s36, s36, s101"); a("s_and_b32 s37, s100, 3")
        self.w16_loads(22, lambda t: t, 16, "s36", "s37")
        a.label("C_noWo1")
        self.stamp(7)
        self.h4()

    def red8_addr(self):
        a = self.a
        a("v_lshrrev_b32 v22, 5, v1"); a("v_lshlrev_b32 v22, 8, v22")
        a("v_and_b32 v23, 7, v1"); a("v_lshl_add_u32 v22, v23, 4, v22")
        a("v_bfe_u32 v23, v1, 3, 2"); a("v_lshl_add_u32 v22, v23, 2, v22")
        a(f"v_add_u32 v18, {RED8}, v22")

    def qa_issue(self):
        a = self.a
        a("v_lshlrev_b32 v96, 4, v1")
        a("s_bfe_u32 s35, s2, 0x30003"); a("s_lshl_b32 s35, s35, 11"); a(f"s_add_u32 s35, s35, {QREC + 0x4000}")
        a("buffer_load_dwordx4 v[100:103], v96, s[12:15], s35 offen sc1")
        a("buffer_load_dwordx4 v[104:107], v96, s[12:15], s35 offen offset:1024 sc1")
    def qa_finish(self):
        a = self.a
        L = a.newlabel("QA"); E = a.newlabel("QE")
        a(f"s_mov_b32 s33, {SPIN//8}")
        a.label(L)
        a("s_waitcnt vmcnt(0)")
        self.vcheck(list(range(100, 108)), "0xffff", "s16")
        a("v_cmp_ne_u32 vcc, 0, v14")
        a(f"s_cbranch_vccz {E}")
        a("s_sub_u32 s33, s33, 1")
        a(f"s_cbranch_scc1 {E}")
        self.qa_issue()
        a(f"s_branch {L}")
        a.label(E)
        for i in range(4):
            a(f"v_perm_b32 v{20+i}, v{101+2*i}, v{100+2*i}, v16")
        a("v_lshlrev_b32 v24, 3, v1"); a(f"v_add_u32 v24, {QA}, v24")
        a("ds_write_b64 v24, v[20:21]")
        a("ds_write_b64 v24, v[22:23] offset:512")
        self.lds_signal(F_QA)

    def battn(self):
        a = self.a
        self.exch(1)
        a("s_and_b32 s34, s2, 7"); a("s_lshl_b32 s34, s34, 8"); a("s_lshl_b32 s35, s3, 6"); a("s_add_u32 s34, s34, s35")
        self.spoll(1, "s34", HQ, "-1", "s16")
        self.lds_signal_w(F_H)
        self.stamp(4)
        self.qabs_gather()
        self.stamp(5)
        self.lds_wait(F_T2, 4)
        seq = [(kb, t) for kb in range(4) for t in range(8)]
        NB = 8
        for half in range(2):
            if half: self.lds_wait(F_T3, 4)
            sq = seq[16*half:16*half+16]
            for i in range(NB): self.row_read(64+4*i, *sq[i])
            for i in range(16):
                kb, t = sq[i]
                issued = min(16, i + NB)
                a(f"s_waitcnt lgkmcnt({issued - 1 - i})")
                a(f"v_mfma_f32_16x16x32_bf16 {vr(96+4*kb)}, {vr(64+4*(i % NB))}, {vr(32+4*t)}, {'0' if t == 0 else vr(96+4*kb)}")
                if i + NB < 16: self.row_read(64+4*(i % NB), *sq[i+NB])
        self.stamp(6)
        self.exch(1, "main")
        a("v_lshlrev_b32 v24, 3, v1"); a(f"v_add_u32 v24, {PB}, v24")
        for x in range(8): a(f"ds_read_b64 v[{96+2*x}:{97+2*x}], v24 offset:{512*x}")
        a("v_lshrrev_b32 v25, 4, v1"); a("v_lshlrev_b32 v25, 19, v25")
        a("v_and_b32 v21, 15, v1"); a("v_lshl_add_u32 v25, v21, 4, v25")
        a("s_sub_u32 s36, s2, 192"); a("s_lshl_b32 s36, s36, 9")
        a("s_lshl_b32 s29, s3, 15"); a("s_add_u32 s36, s36, s29"); a(f"s_add_u32 s36, s36, {LREC}")
        for r in range(1, 4): a(f"s_add_u32 s{36+r}, s36, {r*4*32768}")
        a("s_cmp_lg_u32 s3, 0"); a("s_cbranch_scc1 C_noLST")
        a(f"ds_read_b128 v[112:115], v27 offset:{LB-MX}"); a(f"ds_read_b128 v[116:119], v27 offset:{LB-MX+16}")
        a("s_waitcnt lgkmcnt(0)")
        for r in range(4): a(f"v_add_f32 v{112+r}, v{112+r}, v{116+r}")
        a("v_add_f32 v112, v112, v113"); a("v_add_f32 v114, v114, v115"); a("v_add_f32 v112, v112, v114")
        a("v_or_b32 v22, s17, v26")
        a("v_and_or_b32 v23, v112, v19, s17")
        a("v_lshlrev_b32 v21, 9, v1")
        a("s_sub_u32 s28, s2, 192"); a("s_lshl_b32 s28, s28, 3"); a(f"s_add_u32 s28, s28, {LST}")
        a("s_mov_b64 exec, 0xffff")
        a("buffer_store_dwordx2 v[22:23], v21, s[12:15], s28 offen sc1")
        a("s_mov_b64 exec, -1")
        a.label("C_noLST")
        a("s_waitcnt lgkmcnt(0)")
        self.stamp(14)
        for cb in range(16):
            for s in range(2):
                a(f"v_mfma_f32_16x16x32_bf16 {vr(32+4*cb)}, {vr(96+4*s)}, {vr(128+8*cb+4*s)}, {'0' if s == 0 else vr(32+4*cb)}")
            for s in range(2): self.tr_read(128+8*cb+4*s, cb, s)
        def pack_store(r, half, b):
            for j in range(4):
                cb = 8*half + 2*j
                self.tagpack(b+j, 32+4*cb+r, 32+4*(cb+1)+r)
            if "s" not in self.abl: a(f"buffer_store_dwordx4 {vr(b)}, v25, s[12:15], s{36+r} offen offset:{256*half} sc1")
        for cb in range(16):
            a(f"s_waitcnt lgkmcnt({min(15, 4*(15-cb))})")
            for s in range(2):
                a(f"v_mfma_f32_16x16x32_bf16 {vr(32+4*cb)}, {vr(104+4*s)}, {vr(128+8*cb+4*s)}, {vr(32+4*cb)}")
            if cb >= 9 and cb & 1: pack_store((cb-9)//2, 0, 112 + 4*((cb-9)//2))
        for r in range(4): pack_store(r, 1, 128 + 4*r)
        a("v_lshlrev_b32 v21, 10, v1"); a("v_mov_b32 v23, s16")
        a("s_sub_u32 s28, s2, 192"); a("s_lshl_b32 s28, s28, 2"); a("s_lshl_b32 s29, s3, 8"); a("s_add_u32 s28, s28, s29")
        a(f"s_add_u32 s28, s28, {HL}")
        a("s_mov_b64 exec, 0xff")
        a("buffer_store_dword v23, v21, s[12:15], s28 offen sc1")
        a("s_mov_b64 exec, -1")
        self.stamp(15)
        if self.ldack: a("s_waitcnt vmcnt(0)")
        self.lds_signal(F_LD)

    def wpack(self, d, x, t):
        a = self.a
        a(f"v_cvt_pk_bf16_f32 v{t}, v{x}, v{x}"); a(f"v_lshlrev_b32 v{t}, 16, v{t}"); a(f"v_sub_f32 v{t}, v{x}, v{t}")
        a(f"v_cvt_pk_bf16_f32 v{d}, v{x}, v{t}")
    def lweights(self, steps):
        a = self.a
        for i in range(8): a(f"v_and_b32 v{64+i}, v19, v{64+i}")
        a("v_max3_f32 v72, v64, v66, v68"); a("v_max_f32 v72, v72, v70")
        def red(op, v):
            if steps == 3: a(f"{op} v{v}, v{v}, v{v} row_ror:8 row_mask:0xf bank_mask:0xf")
            self.xred(op, v, 74, 16); self.xred(op, v, 74, 32)
        red("v_max_f32", 72)
        for i in range(4): a(f"v_sub_f32 v{64+2*i}, v{64+2*i}, v72")
        for i in range(4): a(f"v_exp_f32 v{64+2*i}, v{64+2*i}")
        a("v_mul_f32 v73, v64, v65")
        for i in range(1, 4): a(f"v_fmac_f32 v73, v{64+2*i}, v{65+2*i}")
        for i in range(4): a(f"v_cvt_pk_bf16_f32 v{65+2*i}, v{64+2*i}, v{64+2*i}")
        for i in range(4): a(f"v_lshlrev_b32 v{65+2*i}, 16, v{65+2*i}")
        for i in range(4): a(f"v_sub_f32 v{65+2*i}, v{64+2*i}, v{65+2*i}")
        for i in range(4): a(f"v_cvt_pk_bf16_f32 v{64+2*i}, v{64+2*i}, v{65+2*i}")
        return red

    def h4(self):
        a = self.a
        a("v_lshrrev_b32 v29, 4, v1"); a("v_lshlrev_b32 v30, 11, v29"); a("v_and_b32 v31, 15, v1"); a("v_lshl_add_u32 v30, v31, 4, v30")
        a("v_lshlrev_b32 v29, 5, v29")
        a("v_and_b32 v20, 8, v1"); a("v_cmp_ne_u32 vcc, 0, v20")
        for w in range(4): a(f"v_cndmask_b32 v{80+w}, v{4+w}, v{8+w}, vcc")
        a("s_lshl_b32 s28, s3, 3"); a(f"s_add_u32 s28, s28, {WST}"); a("v_mov_b32 v84, s28")
        a(f"v_mov_b32 v31, {WST}")
        a("s_lshl_b32 s28, s3, 11"); a(f"s_add_u32 s28, s28, {REDL}"); a("v_lshl_add_u32 v85, v1, 4, s28")
        a("s_lshr_b32 s28, s3, 1"); a("s_lshl_b32 s28, s28, 10"); a("s_and_b32 s29, s3, 1"); a("s_lshl_b32 s29, s29, 9"); a("s_add_u32 s28, s28, s29")
        a(f"s_add_u32 s28, s28, {REDL}")
        a("v_lshrrev_b32 v86, 3, v1"); a("v_lshl_add_u32 v86, v86, 4, s28")
        a("s_lshl_b32 s28, s3, 10"); a(f"s_add_u32 s28, s28, {RED8}"); a("v_lshl_add_u32 v87, v1, 4, s28")
        a("s_bfe_u32 s34, s100, 0x30002"); a("s_lshl_b32 s34, s34, 10")
        a("s_and_b32 s35, s100, 3"); a("s_lshl_b32 s35, s35, 8"); a("s_add_u32 s34, s34, s35")
        a("s_lshl_b32 s35, s3, 6"); a("s_add_u32 s34, s34, s35")
        a("s_lshl_b32 s60, s100, 15"); a("s_lshl_b32 s35, s3, 13"); a("s_add_u32 s60, s60, s35"); a(f"s_add_u32 s60, s60, {LREC}")
        a("s_lshr_b32 s61, s100, 2"); a("s_lshl_b32 s61, s61, 9"); a("s_lshl_b32 s35, s3, 7"); a("s_add_u32 s61, s61, s35"); a(f"s_add_u32 s61, s61, {LST}")
        self.spoll(1, "s34", HL, "-1", "s16", lazy=self.lazy)
        self.stamp(8)
        L = a.newlabel("G4"); E = a.newlabel("G4E")
        a(f"s_mov_b32 s36, {SPIN//8}")
        a.label(L)
        a("buffer_load_dwordx4 v[64:67], v29, s[12:15], s61 offen sc1")
        a("buffer_load_dwordx4 v[68:71], v29, s[12:15], s61 offen offset:16 sc1")
        for tt in range(4):
            for half in range(2):
                if "l" not in self.abl: a(f"buffer_load_dwordx4 {vr(32+8*tt+4*half)}, v30, s[12:15], s60 offen offset:{tt*512 + half*256} sc1")
        a("s_waitcnt vmcnt(8)" if "l" not in self.abl else "s_waitcnt vmcnt(0)")
        self.vcheck(list(range(64, 72)), "0xff", "s17")
        red = self.lweights(2)
        red("v_add_f32", 73)
        for tt in range(4):
            for w in range(4):
                a(f"v_perm_b32 v{88+4*tt+w}, v{64+2*tt}, v{64+2*tt}, v{80+w}")
        a("s_waitcnt vmcnt(0)")
        for tt in range(4):
            for half in range(2):
                a(f"v_mfma_f32_16x16x32_bf16 {vr(104+4*half)}, {vr(32+8*tt+4*half)}, {vr(88+4*tt)}, {'0' if tt == 0 else vr(104+4*half)}")
        if "s" not in self.abl and "l" not in self.abl: self.vcheck(list(range(32, 64)), "0x00010001", "s18", first=False)
        a("v_cmp_ne_u32 vcc, 0, v14")
        a(f"s_cbranch_vccz {E}")
        a("s_sub_u32 s36, s36, 1")
        a(f"s_cbranch_scc0 {L}")
        a.label(E)
        self.stamp(9)
        a("ds_write_b128 v85, v[104:107]")
        a("ds_write_b128 v85, v[108:111] offset:1024")
        a("s_mov_b64 exec, 1")
        a("ds_write_b64 v84, v[72:73]")
        a("s_mov_b64 exec, -1")
        self.csync()
        a("ds_read_b128 v[64:67], v31"); a("ds_read_b128 v[68:71], v31 offset:16")
        for tq in range(2):
            for w in range(4):
                for sel in range(2):
                    a(f"ds_read_b128 {vr(96 + 32*tq + 8*w + 4*sel)}, v86 offset:{2048*w + 256*tq + 128*sel}")
        a("s_waitcnt lgkmcnt(15)")
        a("v_max3_f32 v72, v64, v66, v68"); a("v_max_f32 v72, v72, v70")
        for i in range(4): a(f"v_sub_f32 v{64+2*i}, v{64+2*i}, v72")
        for i in range(4): a(f"v_exp_f32 v{64+2*i}, v{64+2*i}")
        a("v_mul_f32 v73, v64, v65")
        for i in range(1, 4): a(f"v_fmac_f32 v73, v{64+2*i}, v{65+2*i}")
        a("v_rcp_f32 v73, v73")
        for i in range(4): a(f"v_mul_f32 v{64+2*i}, v{64+2*i}, v73")
        for tq in range(2):
            a(f"s_waitcnt lgkmcnt({8*(1-tq)})")
            b = 96 + 32*tq
            for w in range(4):
                for i in range(4): a(f"v_add_f32 v{b+8*w+i}, v{b+8*w+i}, v{b+8*w+4+i}")
            for i in range(4): a(f"v_mul_f32 v{b+i}, v64, v{b+i}")
            for w in range(1, 4):
                for i in range(4): a(f"v_fmac_f32 v{b+i}, v{64+2*w}, v{b+8*w+i}")
            a(f"v_cvt_pk_bf16_f32 v{76+2*tq}, v{b}, v{b+1}"); a(f"v_cvt_pk_bf16_f32 v{77+2*tq}, v{b+2}, v{b+3}")
            for t in range(4*tq, 4*tq+4):
                for w in range(4):
                    a(f"v_perm_b32 v{32+4*t+w}, v{76+t//2}, v{76+t//2}, v{(8 if t & 1 else 4)+w}")
            for t in range(4*tq, 4*tq+4):
                a(f"v_mfma_f32_16x16x32_bf16 v[72:75], {vr(160+4*t)}, {vr(32+4*t)}, {'0' if t == 0 else 'v[72:75]'}")
        a("ds_write_b128 v87, v[72:75]")
        self.ccount += 4
        self.lds_signal(F_C)
        a("s_and_b32 s34, s100, 0x3c"); a("s_add_u32 s34, s34, s101"); a("s_lshl_b32 s34, s34, 9")
        a("s_cmp_lg_u32 s3, 0"); a("s_cbranch_scc1 C_H5")
        a("v_lshlrev_b32 v30, 1, v1")
        a("s_and_b32 s35, s100, 3"); a("s_lshl_b32 s35, s35, 7"); a("s_add_u32 s35, s35, s34"); a(f"s_add_u32 s35, s35, {CTX}")
        a(f"v_add_u32 v31, {CT}, v30")
        self.lds_wait(F_C, self.ccount)
        self.red8(28)
        a("v_mov_b32 v29, v28 quad_perm:[1,0,3,2] row_mask:0xf bank_mask:0xf")
        self.tagpack(28, 28, 29)
        a("s_mov_b32 exec_lo, 0x55555555"); a("s_mov_b32 exec_hi, 0x55555555")
        a("buffer_store_dword v28, v30, s[12:15], s35 offen sc1")
        a("ds_write_b32 v31, v28")
        a("s_mov_b64 exec, -1")
        self.lds_signal(F_CT)
        self.stamp(10)
        self.dump_stamps(1)
        a("s_endpgm")
        a.label("C_H5")
        a("s_add_u32 s35, s100, s3"); a("s_and_b32 s35, s35, 3"); a("s_lshl_b32 s35, s35, 7"); a("s_add_u32 s34, s34, s35")
        self.spoll(2, "s34", CTX, "0x00010001", "s18")
        a("v_mov_b32 v20, 0")
        for i in range(32):
            a(f"v_writelane_b32 v20, s{36+i}, {i}")
        a("s_lshl_b32 s28, s3, 7"); a(f"s_add_u32 s28, s28, {CT}")
        a("v_lshl_add_u32 v21, v1, 2, s28")
        a("s_mov_b32 exec_hi, 0")
        a("ds_write_b32 v21, v20")
        a("s_mov_b64 exec, -1")
        self.lds_signal(F_CT)
        a("s_cmp_lg_u32 s3, 1"); a("s_cbranch_scc1 L_end")
        a("v_and_b32 v21, 31, v1"); a("v_lshlrev_b32 v21, 2, v21"); a(f"v_add_u32 v21, {CT}, v21")
        a("v_lshrrev_b32 v22, 4, v1"); a("v_lshlrev_b32 v22, 5, v22"); a(f"v_add_u32 v22, {CT2}, v22")
        self.lds_wait(F_CT, 4)
        for k in range(4): a(f"ds_read_b32 v{24+k}, v21 offset:{128*k}")
        a("s_waitcnt lgkmcnt(0)")
        for k in range(4):
            a(f"v_lshlrev_b32 v{28+k}, 16, v{24+k}"); a(f"v_and_b32 v{24+k}, 0xffff0000, v{24+k}")
        a("v_add_f32 v28, v28, v29"); a("v_add_f32 v30, v30, v31"); a("v_add_f32 v24, v24, v25"); a("v_add_f32 v26, v26, v27")
        a("v_add_f32 v28, v28, v30"); a("v_add_f32 v24, v24, v26")
        a("v_cvt_pk_bf16_f32 v24, v28, v24")
        a(f"ds_write_b32 v21, v24 offset:{CT2-CT}")
        a("s_waitcnt lgkmcnt(0)")
        a("ds_read_b128 v[24:27], v22"); a("ds_read_b128 v[28:31], v22 offset:16")
        a("s_waitcnt lgkmcnt(0) vmcnt(0)")
        self.gemv16(24)
        self.stamp(10)
        self.lds_wait(F_SD, 4, sleep=2)
        a("s_and_b32 s34, s100, 0x3c"); a("s_add_u32 s34, s34, s101"); a("s_and_b32 s35, s100, 3")
        self.publish_out(1, 96, "s34", "s35")
        self.stamp(11)
        a("s_cmp_lt_u32 s2, 128"); a("s_cbranch_scc1 C_1end")
        a("s_cmp_ge_u32 s2, 240"); a("s_cbranch_scc1 C_1end")
        a("s_sub_u32 s34, s2, 128")
        self.reduce_out(1, "s34")
        a.label("C_1end")
        self.stamp(12)
        if self.diag is not None and self.diag >= 100: self.diag_spin(self.diag - 100)
        self.dump_stamps(2)
        a("s_endpgm")

    def gemv16(self, src):
        a = self.a
        def prep(t):
            for w in range(4):
                a(f"v_perm_b32 v{32+4*t+w}, v{src+t//2}, v{src+t//2}, v{(8 if t & 1 else 4)+w}")
        prep(0)
        for t in range(16):
            if t < 15: prep(t+1)
            a(f"v_mfma_f32_16x16x32_bf16 v[96:99], {vr(192+4*t)}, {vr(32+4*t)}, {'0' if t == 0 else 'v[96:99]'}")

    def tail(self):
        a = self.a
        a(f"v_add_u32 v101, {MRG}, v18")
        a("v_and_b32 v102, 15, v1"); a("v_lshlrev_b32 v102, 3, v102"); a(f"v_add_u32 v102, {MRGS}, v102")
        self.lds_wait(F_SD, 4)
        self.stamp(11)
        for w in range(4):
            a(f"ds_read_b64 v[{64+2*w}:{65+2*w}], v102 offset:{128*w}")
        for w in range(4):
            a(f"ds_read_b128 {vr(32+8*w)}, v101 offset:{2048*w}")
            a(f"ds_read_b128 {vr(36+8*w)}, v101 offset:{2048*w+1024}")
        a("s_waitcnt lgkmcnt(8)")
        a("v_max3_f32 v72, v64, v66, v68"); a("v_max_f32 v72, v72, v70"); a("v_and_b32 v72, v19, v72")
        for w in range(4): a(f"v_sub_f32 v{64+2*w}, v{64+2*w}, v72")
        for w in range(4): a(f"v_exp_f32 v{64+2*w}, v{64+2*w}")
        a("v_mul_f32 v73, v64, v65")
        for w in range(1, 4): a(f"v_fmac_f32 v73, v{64+2*w}, v{65+2*w}")
        a("v_or_b32 v72, s17, v72"); a("v_and_or_b32 v73, v73, v19, s17")
        a("s_mov_b64 exec, 0x101")
        a("buffer_store_dwordx2 v[72:73], v105, s[12:15], s39 offen sc1")
        a("s_mov_b64 exec, -1")
        a("s_waitcnt lgkmcnt(0)")
        for i in range(8): a(f"v_mul_f32 v{32+i}, v64, v{32+i}")
        for w in range(1, 4):
            for i in range(8): a(f"v_fmac_f32 v{32+i}, v{64+2*w}, v{32+8*w+i}")
        for k in range(4): self.tagpack(76+k, 32+2*k, 33+2*k)
        a("buffer_store_dwordx2 v[76:77], v103, s[12:15], s38 offen sc1")
        a("buffer_store_dwordx2 v[78:79], v104, s[12:15], s38 offen sc1")
        self.stamp(12)
        def h6_loads():
            a("buffer_load_dwordx4 v[64:67], v106, s[12:15], s41 offen sc1")
            a("buffer_load_dwordx4 v[68:71], v106, s[12:15], s41 offen offset:16 sc1")
            for i in range(4):
                a(f"buffer_load_dwordx4 {vr(112+4*i)}, v107, s[12:15], s40 offen offset:{128*i} sc1")
        h6_loads()
        a("s_waitcnt vmcnt(9)")
        self.lds_signal(F_WO)
        self.lds_wait(F_WO, 4)
        for t in range(16): a(f"ds_read_b128 {vr(192+4*t)}, v18 offset:{1024*t}")
        L = a.newlabel("G6"); E = a.newlabel("G6E")
        a(f"s_mov_b32 s33, {SPIN//8}")
        a.label(L)
        a("s_waitcnt vmcnt(0)")
        self.vcheck(list(range(112, 128)), "0x00010001", "s18")
        self.vcheck(list(range(64, 72)), "0xff", "s17", first=False)
        a("v_cmp_ne_u32 vcc, 0, v14")
        a(f"s_cbranch_vccz {E}")
        a("s_sub_u32 s33, s33, 1")
        a(f"s_cbranch_scc1 {E}")
        h6_loads()
        a(f"s_branch {L}")
        a.label(E)
        self.stamp(13)
        red = self.lweights(3)
        for i in range(4):
            for w in range(4):
                a(f"v_perm_b32 v{128+4*i+w}, v{64+2*i}, v{64+2*i}, v{4+w}")
            for w in range(4):
                a(f"v_perm_b32 v{144+4*i+w}, v{64+2*i}, v{64+2*i}, v{8+w}")
            a(f"v_mfma_f32_16x16x32_bf16 v[80:83], {vr(112+4*i)}, {vr(128+4*i)}, {'0' if i == 0 else 'v[80:83]'}")
            a(f"v_mfma_f32_16x16x32_bf16 v[80:83], {vr(112+4*i)}, {vr(144+4*i)}, v[80:83]")
        red("v_add_f32", 73)
        a("v_rcp_f32 v84, v73")
        for r in range(4): a(f"v_mul_f32 v{72+r}, v{80+r}, v84")
        for r in range(4): a(f"v_mov_b32 v{76+r}, v{72+r}")
        for r in range(4): a(f"v_permlane32_swap_b32 v{72+r}, v{76+r}")
        for r in range(4): a(f"v_add_f32 v{72+r}, v{76+r}, v{72+r} row_ror:8 row_mask:0xf bank_mask:0xf")
        a("v_cvt_pk_bf16_f32 v72, v72, v73"); a("v_cvt_pk_bf16_f32 v73, v74, v75")
        for k in range(8):
            q = k >> 1
            a(f"ds_bpermute_b32 v{24+k}, v108, v{72+(k & 1)} offset:{(16*(q >> 1) + 4*(q & 1))*4}")
        a("s_waitcnt lgkmcnt(0)")
        self.gemv16(24)
        self.publish_out(0, 96, "s100", "s101")
        self.stamp(14)
        a("s_cmp_ge_u32 s2, 112"); a("s_cbranch_scc1 S_0end")
        self.reduce_out(0, "s2")
        a("s_cmp_lg_u32 s2, 0"); a("s_cbranch_scc1 S_0end")
        a("v_mov_b32 v20, s16"); a("v_mov_b32 v21, 0")
        a("s_mov_b64 exec, 1")
        a("buffer_store_dword v20, v21, s[12:15], 0 offen sc1")
        a("s_mov_b64 exec, -1")
        a.label("S_0end")
        self.stamp(15)
        if self.diag is not None and self.diag < 100: self.diag_spin(self.diag)
        self.dump_stamps(0)

    def tail_addrs(self):
        a = self.a
        a("v_bfe_u32 v103, v1, 3, 1"); a("v_lshlrev_b32 v103, 14, v103")
        a("v_lshrrev_b32 v23, 5, v1"); a("v_lshl_add_u32 v103, v23, 12, v103")
        a("v_bfe_u32 v23, v1, 4, 1"); a("v_lshl_add_u32 v103, v23, 6, v103")
        a("v_and_b32 v23, 7, v1"); a("v_lshl_add_u32 v103, v23, 3, v103")
        a("v_add_u32 v104, 0x2000, v103")
        a("s_lshr_b32 s34, s2, 6"); a("s_lshl_b32 s34, s34, 3"); a("s_and_b32 s28, s2, 7"); a("s_add_u32 s34, s34, s28")
        a("s_bfe_u32 s35, s2, 0x30003")
        a("s_lshl_b32 s38, s35, 15"); a("s_lshl_b32 s28, s34, 7"); a("s_add_u32 s38, s38, s28"); a(f"s_add_u32 s38, s38, {OREC}")
        a("s_lshl_b32 s39, s35, 9"); a("s_lshl_b32 s28, s34, 3"); a("s_add_u32 s39, s39, s28"); a(f"s_add_u32 s39, s39, {OST}")
        a("v_lshlrev_b32 v105, 5, v1")
        a("s_lshl_b32 s40, s100, 12"); a(f"s_add_u32 s40, s40, {OREC}")
        a("s_lshr_b32 s41, s100, 2"); a("s_lshl_b32 s41, s41, 8"); a(f"s_add_u32 s41, s41, {OST}")
        a("v_lshrrev_b32 v106, 3, v1"); a("v_lshlrev_b32 v107, 9, v106"); a("v_lshlrev_b32 v106, 5, v106")
        a("v_and_b32 v23, 7, v1"); a("v_lshl_add_u32 v107, v23, 4, v107")
        a("v_lshrrev_b32 v108, 4, v1"); a("v_lshlrev_b32 v108, 2, v108")
        a("v_lshrrev_b32 v109, 4, v1"); a(f"v_mul_u32_u24 v109, {8*896}, v109")
        a("v_and_b32 v23, 15, v1"); a("v_lshl_add_u32 v109, v23, 4, v109")
        a("s_cmp_eq_u32 s101, 3"); a("s_cselect_b32 s28, 8, 16")
        a("v_cmp_le_u32 vcc, s28, v23"); a("v_mov_b32 v23, 0x7ff00000"); a("v_cndmask_b32 v109, v109, v23, vcc")
        a("s_lshl_b32 s42, s100, 6"); a("s_lshr_b32 s28, s3, 1"); a("s_lshl_b32 s28, s28, 5"); a("s_add_u32 s42, s42, s28")
        a("s_and_b32 s28, s3, 1"); a("s_add_u32 s42, s42, s28"); a("s_mul_i32 s42, s42, 896")
        a("s_lshl_b32 s28, s101, 8"); a("s_add_u32 s42, s42, s28")
        a("s_lshl_b32 s43, s3, 12")

    def swave(self):
        a = self.a; nt = self.nt
        a("v_mov_b32 v13, 0")
        a("v_lshl_add_u32 v14, v1, 2, v2")
        a("s_mov_b32 exec_hi, 0")
        a("ds_write_b32 v14, v13")
        a("s_mov_b64 exec, -1")
        a("s_mov_b64 s[20:21], s[38:39]")
        a("s_mov_b64 s[22:23], s[40:41]")
        a("s_mov_b64 s[24:25], s[44:45]")
        a("v_lshlrev_b32 v18, 4, v1")
        a("s_cmp_lt_u32 s2, 128"); a("s_cbranch_scc1 S_P")
        a("s_cmp_lt_u32 s2, 192"); a("s_cbranch_scc1 S_A")
        self.srd(4, 48, 16 << 20)
        a("s_sub_u32 s28, s2, 192"); a("s_lshl_b32 s28, s28, 18"); a("s_lshl_b32 s29, s3, 14"); a("s_add_u32 s47, s28, s29")
        a("s_mov_b32 s48, s29")
        a("s_and_b32 s28, s3, 1"); a("s_lshl_b32 s28, s28, 4"); a("v_xor_b32 v110, s28, v18")
        DB = self.DB
        assert DB <= 16 and DB % 2 == 0
        n = 0
        FT = [F_T0, F_T1, F_T2, F_T3]
        CP = self.cpat
        for q in range(4):
            for i in range(8):
                if q >= 2 and i == 0:
                    self.lds_wait([F_X0, F_X1][q-2], 8)
                    self.stamp(q - 1)
                if q in (1, 2) and 2*i == CP:
                    self.lds_wait(FT[q-1], 4)
                    for kb in range(2):
                        for t in range(8): self.row_read(128 + 64*(q-1) + 32*kb + 4*t, 2*(q-1) + kb, t)
                    self.lds_signal([F_X0, F_X1][q-1])
                if n == DB:
                    a("s_waitcnt lgkmcnt(0)"); a("s_barrier")
                    self.consts(); self.row_addrs(); self.tags()
                a(f"v_xor_b32 v23, {i*32}, v110")
                a(f"s_add_u32 m0, s48, {(q & 1)*65536 + i*2048}")
                a(f"s_add_u32 s28, s47, {q*65536 + i*2048}")
                for half in range(2):
                    if n >= DB: a(f"s_waitcnt vmcnt({DB-1})")
                    if (n - (DB - 1)) % 16 == 0 and n - (DB-1) >= 16:
                        self.lds_signal(FT[(n - (DB-1)) // 16 - 1])
                    a(f"buffer_load_dwordx4 v23, s[4:7], s28 offen offset:{1024*half} {nt} lds")
                    n += 1
        self.exch(0)
        self.lds_wait(F_H, 1, perwave=True)
        self.qabs_gather(t3=True)
        self.stamp(3)
        for kb in range(4):
            for t in range(8):
                a(f"v_mfma_f32_16x16x32_bf16 {vr(96+4*kb)}, {vr(128+32*kb+4*t)}, {vr(32+4*t)}, {'0' if t == 0 else vr(96+4*kb)}")
        self.exch(0, "main")
        self.stamp(6)
        self.kv_setup()
        self.claim()
        self.q_ops()
        self.lds_wait(F_LD, 4, sleep=1)
        a("s_branch S_next")
        a.label("S_A")
        self.p2_stage(0)
        self.kv_setup()
        a("s_and_b32 s44, s2, 7"); a("s_add_u32 s44, s44, 16")
        a("s_waitcnt lgkmcnt(0)"); a("s_barrier")
        self.kv_prologue(self.schedA, self.goA)
        a("s_branch S_pro")
        a.label("S_P")
        self.consts(); self.tags()
        self.kv_setup()
        a("s_lshr_b32 s44, s2, 6"); a("s_lshl_b32 s44, s44, 3"); a("s_and_b32 s28, s2, 7"); a("s_add_u32 s44, s44, s28")
        a("s_cmp_lg_u32 s44, 0"); a("s_cbranch_scc1 S_noinit")
        a(f"v_mov_b32 v28, {NSTATIC}"); a("v_mov_b32 v29, s16"); a("v_mov_b32 v30, 0")
        a(f"s_add_u32 s28, s49, {CNT}")
        a("s_mov_b64 exec, 1")
        a("buffer_store_dwordx2 v[28:29], v30, s[12:15], s28 offen sc1")
        a("s_mov_b64 exec, -1")
        a.label("S_noinit")
        a("s_barrier")
        a("s_cmp_lt_u32 s2, 64"); a("s_cbranch_scc1 S_P0")
        self.kv_prologue(self.schedQ, self.goQ)
        a("s_branch S_pro")
        a.label("S_P0")
        self.kv_prologue(self.sched, self.goP)
        a.label("S_pro")
        self.stamp(4)
        self.q_ops()
        self.stamp(5)
        a("s_waitcnt vmcnt(16)")
        self.unit_qk(1)
        for k in range(8): self.pv(k, 1)
        a.raw(".p2align 6")
        a.label("S_loop")
        if self.cpos == 0: self.claim()
        a("s_waitcnt vmcnt(8)")
        self.unit_qk(0, claim=(self.cpos == 1))
        if self.early:
            self.claim_check("S_exit")
            for k in range(8): self.issueK(k, 0, None)
            for k in range(8):
                a(f"s_waitcnt vmcnt(15)")
                self.pv(k, 0)
                self.issueV(k, 0, None)
            a("s_branch S_loop")
            a.label("S_next")
            self.claim_check("S_exit0")
            for k in range(8): self.issueK(k, 0, None)
            for k in range(8): self.issueV(k, 0, None)
            a("s_branch S_loop")
            a.label("S_exit")
            for k in range(4): self.issueWO(k)
            for k in range(8):
                a(f"s_waitcnt vmcnt({11-k})")
                self.pv(k, 0)
            a("s_branch S_fin")
        else:
            for k in range(8):
                a(f"s_waitcnt vmcnt({7-k})")
                self.pv(k, 0)
            self.stamp_dyn()
            a.label("S_next")
            self.claim_check("S_exit0")
            for k in range(8): self.issueK(k, 0, None if k < self.bw else self.bw)
            for k in range(8): self.issueV(k, 0, None if k + 8 < self.bw else self.bw)
            a("s_branch S_loop")
        a.label("S_exit0")
        for k in range(4): self.issueWO(k)
        a.label("S_fin")
        a.settle()
        self.xred("v_add_f32", 27, 24, 16); self.xred("v_add_f32", 27, 24, 32)
        a("s_lshl_b32 s28, s3, 11"); a(f"s_add_u32 s28, s28, {MRG}"); a("v_add_u32 v23, s28, v18")
        a("ds_write_b128 v23, v[64:67]"); a("ds_write_b128 v23, v[68:71] offset:1024")
        a("s_lshl_b32 s28, s3, 7"); a(f"s_add_u32 s28, s28, {MRGS}"); a("v_lshl_add_u32 v23, v1, 3, s28")
        a("s_mov_b64 exec, 0xffff")
        a("ds_write_b64 v23, v[26:27]")
        a("s_mov_b64 exec, -1")
        self.lds_signal(F_SD)
        self.stamp(10)
        a("s_cmp_eq_u32 s3, 0"); a("s_cbranch_scc1 S_tail")
        a("s_waitcnt vmcnt(0)")
        self.lds_signal(F_WO)
        a("s_endpgm")
        a.label("S_tail")
        a("s_setprio 3")
        self.tail()

    def issueK(self, k, slot, win):
        a = self.a
        if win: a(f"s_waitcnt vmcnt({win-1})")
        a(f"s_add_u32 m0, s47, {slot*8192 + k*1024}")
        a(f"buffer_load_dwordx4 v{224+k}, s[4:7], s30 offen {self.nt} lds")
    def issueV(self, k, slot, win):
        a = self.a
        if win: a(f"s_waitcnt vmcnt({win-1})")
        r, half = divmod(k, 2)
        a(f"buffer_load_dwordx4 {vr(128 + 32*slot + 4*k)}, v{93 + (r >> 1)}, s[8:11], s30 offen offset:{(r & 1)*2048 + half*256} {self.nt}")
    def issueWO(self, k):
        a = self.a
        a(f"s_add_u32 m0, s43, {1024*k}")
        a(f"s_add_u32 s28, s42, {2*k*896}")
        a(f"buffer_load_dwordx4 v109, s[64:67], s28 offen {self.nt} lds")
    def claim(self):
        a = self.a
        a("s_mov_b64 s[50:51], 1")
        a(f"s_atomic_add_x2 s[50:51], s[12:13], s49 offset:{CNT} glc")
    def claim_check(self, exit_label):
        a = self.a
        L = a.newlabel("CK"); OK = a.newlabel("CO")
        a(f"s_mov_b32 s33, {SPIN//8}")
        a.label(L)
        a("s_waitcnt lgkmcnt(0)")
        a("s_cmp_eq_u32 s51, s16"); a(f"s_cbranch_scc1 {OK}")
        a("s_sub_u32 s33, s33, 1"); a(f"s_cbranch_scc1 {exit_label}")
        self.claim()
        a(f"s_branch {L}")
        a.label(OK)
        a("s_cmp_ge_u32 s50, 128"); a(f"s_cbranch_scc1 {exit_label}")
        self.unit_off("s50")
    def unit_off(self, sidx):
        a = self.a
        a(f"s_mul_i32 s30, {sidx}, 37"); a("s_and_b32 s30, s30, 127"); a("s_lshl_b32 s30, s30, 15"); a("s_add_u32 s30, s30, s48")
    def kv_setup(self):
        a = self.a
        a("v_lshrrev_b32 v95, 5, v1"); a("v_lshlrev_b32 v94, 2, v95"); a("v_and_b32 v92, 31, v1"); a("v_xor_b32 v92, v92, v94")
        a("v_lshlrev_b32 v92, 4, v92"); a("v_lshl_add_u32 v92, v95, 9, v92")
        for k in range(8):
            a(f"v_xor_b32 v{224+k}, {(8*(k & 1) + (k >> 1))*16 + k*1024}, v92")
        a("s_lshl_b32 s47, s3, 14"); a("s_add_u32 s47, s47, 16384")
        a("v_and_b32 v94, 3, v1"); a("v_lshlrev_b32 v94, 2, v94"); a("v_bfe_u32 v95, v1, 2, 2"); a("v_add_u32 v94, v94, v95")
        a("v_lshlrev_b32 v92, 9, v94")
        a("v_lshrrev_b32 v95, 4, v1"); a("v_and_b32 v94, 15, v1"); a("v_xor_b32 v93, v95, v94"); a("v_lshl_add_u32 v92, v93, 4, v92")
        a("v_add_u32 v92, s47, v92")
        for t in range(4): a(f"v_xor_b32 v{232+t}, {64*t}, v92")
        a("v_lshlrev_b32 v93, 9, v95"); a("v_lshl_add_u32 v93, v94, 4, v93")
        a("v_add_u32 v94, 0x1000, v93")
        a("s_bfe_u32 s45, s2, 0x30003")
        a("s_lshr_b32 s48, s2, 6"); a("s_add_u32 s48, s48, s2"); a("s_add_u32 s48, s48, s3"); a("s_and_b32 s48, s48, 3")
        a("s_lshl_b32 s49, s45, 2"); a("s_add_u32 s49, s49, s48"); a("s_lshl_b32 s49, s49, 7")
        a("s_lshl_b32 s45, s45, 22")
        a(f"s_mov_b32 s46, {CEXP:#x}")
        a("s_add_u32 s4, s20, s45"); a("s_addc_u32 s5, s21, 0"); a(f"s_mov_b32 s6, {4<<20}"); a("s_mov_b32 s7, 0x00020000")
        a("s_add_u32 s8, s22, s45"); a("s_addc_u32 s9, s23, 0"); a(f"s_mov_b32 s10, {4<<20}"); a("s_mov_b32 s11, 0x00020000")
        self.srd(64, 24, 4096*896)
        a("s_lshl_b32 s48, s48, 13")
        a("s_mov_b32 s52, 16")
        a("v_mov_b32 v26, 0xf149f2ca"); a("v_mov_b32 v27, 0")
        for r in range(8): a(f"v_mov_b32 v{64+r}, 0")
        self.tail_addrs()
    def kv_prologue(self, sched, go):
        a = self.a
        self.unit_off("s44")
        for i in range(32):
            win = self.D
            for upto, w in sched:
                if i < upto: win = w; break
            if i < win: win = None
            if i == go: self.lds_signal(F_GO)
            if i == 16:
                a("s_add_u32 s44, s44, 24"); self.unit_off("s44")
            u, k = divmod(i, 16)
            if k < 8: self.issueK(k, 1 - u, win)
            else: self.issueV(k - 8, 1 - u, win)
    def q_ops(self):
        a = self.a
        a("v_bfe_u32 v23, v1, 3, 1"); a("v_lshlrev_b32 v23, 9, v23"); a("v_lshrrev_b32 v24, 4, v1"); a("v_lshl_add_u32 v23, v24, 4, v23")
        a(f"v_add_u32 v23, {QA}, v23")
        self.lds_wait(F_QA, 4, sleep=1)
        for t in range(8): a(f"ds_read_b128 {vr(32+4*t)}, v23 offset:{64*t}")
        a("s_waitcnt lgkmcnt(0)")
    def pv(self, k, slot):
        r, half = divmod(k, 2)
        self.a(f"v_mfma_f32_16x16x32_bf16 {vr(64+4*half)}, {vr(128+32*slot+4*k)}, {vr(76+4*r)}, {vr(64+4*half)}")
    def unit_qk(self, slot, claim=False):
        a = self.a; M, Lr = 26, 27
        for t in range(8):
            a(f"ds_read_b128 {vr(192+4*t)}, v{232+(t & 3)} offset:{slot*8192 + (t >> 2)*256}")
        for t in range(8):
            a(f"s_waitcnt lgkmcnt({7-t})")
            a(f"v_mfma_f32_16x16x32_bf16 v[72:75], {vr(192+4*t)}, {vr(32+4*t)}, {'0' if t == 0 else 'v[72:75]'}")
        if claim: self.claim()
        if self.round_s:
            a("v_cvt_pk_bf16_f32 v28, v72, v73"); a("v_cvt_pk_bf16_f32 v29, v74, v75")
            a("v_lshlrev_b32 v72, 16, v28"); a("v_and_b32 v73, 0xffff0000, v28")
            a("v_lshlrev_b32 v74, 16, v29"); a("v_and_b32 v75, 0xffff0000, v29")
        a("v_max3_f32 v28, v72, v73, v74"); a("v_max_f32 v28, v28, v75")
        self.xred("v_max_f32", 28, 29, 16); self.xred("v_max_f32", 28, 29, 32)
        a("v_mul_f32 v28, s46, v28")
        a(f"v_max_f32 v28, v28, v{M}")
        a(f"v_sub_f32 v30, v{M}, v28"); a("v_exp_f32 v30, v30")
        a(f"v_mov_b32 v{M}, v28")
        for r in range(4): a(f"v_fma_f32 v{72+r}, v{72+r}, s46, -v{M}")
        for r in range(4): a(f"v_exp_f32 v{72+r}, v{72+r}")
        for r in range(8): a(f"v_mul_f32 v{64+r}, v{64+r}, v30")
        a(f"v_fma_f32 v{Lr}, v{Lr}, v30, v72")
        for r in range(1, 4): a(f"v_add_f32 v{Lr}, v{Lr}, v{72+r}")
        a("v_cvt_pk_bf16_f32 v28, v72, v73"); a("v_cvt_pk_bf16_f32 v29, v74, v75")
        for r in range(4):
            for w in range(4):
                a(f"v_perm_b32 v{76+4*r+w}, v{28+r//2}, v{28+r//2}, v{(8 if r & 1 else 4)+w}")

def psched(x): return tuple(tuple(int(v) for v in p.split(':')) for p in x.split(',') if p)
if __name__ == "__main__":
    import argparse
    ap = argparse.ArgumentParser()
    ap.add_argument("out"); ap.add_argument("--nt", default="nt")
    for k, v in (("D", 8), ("DB", 8), ("goP", 12), ("goA", 6), ("wqd", 1), ("p2d", 4), ("cpat", 10), ("pf", 1), ("ldack", 0), ("cpos", 0), ("early", 0), ("lazy", 20), ("goQ", 10), ("bw", 16)):
        ap.add_argument("--" + k, type=int, default=v)
    ap.add_argument("--sched", default="4:1,12:4"); ap.add_argument("--schedA", default="6:4"); ap.add_argument("--schedQ", default="10:4")
    ap.add_argument("--abl", default=""); ap.add_argument("--nostamps", action="store_true"); ap.add_argument("--diag", type=int, default=None)
    x = ap.parse_args()
    g = G(nt=x.nt, D=x.D, DB=x.DB, stamps=not x.nostamps, diag=x.diag, sched=psched(x.sched), schedA=psched(x.schedA), goP=x.goP, goA=x.goA, wqd=x.wqd, p2d=x.p2d, cpat=x.cpat, pf=x.pf, ldack=x.ldack, cpos=x.cpos, early=x.early, abl=x.abl, lazy=x.lazy, schedQ=psched(x.schedQ), goQ=x.goQ, bw=x.bw)
    open(x.out, "w").write(g.build())
```

```python
import sys
from asmlib import Asm, vr, sr
NAME = "concat_heads__gqa_block_cached__compressed_kv_cla__decode"

WS_STAMP = 0x1000
QREC = 0x20000; QABS = 0x40000; HQ = 0x48000; HL = 0x4A000; LST = 0x4C000
CNT = 0x4E000; CTX = 0x50000; OST = 0x60000; OREC = 0x70000; OUTP = 0xB0000; LREC = 0x100000
WS_BYTES = 0x300000
TILE = 0
SC = 131072
PS = SC
RED8 = SC
RED2 = SC + 8192
REDL = SC + 8192
MRG = SC + 16384
PB = SC + 24576
MX = SC + 28672
LB = SC + 29184
QA = SC + 29696
MRGS = SC + 30720
CT = SC + 31232
CT2 = SC + 31744
FLG = SC + 32000
(F_C, F_QA, F_T0, F_T1, F_T2, F_T3, F_X0, F_X1, F_1a, F_1b, F_2, F_3, F_SD, F_R, F_CT, F_WO, F_LD, F_H) = [FLG + 4*i for i in range(18)]
F_GO = F_R
WST = SC + 31872
LDS_BYTES = 163840
CEXP = 0x3DB8AA3B
SPIN = 200000
NSTATIC = 48

class G:
    def __init__(self, nt="nt", D=8, DB=8, stamps=True, round_s=True, diag=None, sched=((6, 1), (12, 3)), schedA=((4, 2),), goP=12, goA=4, wqd=1, p2d=4, cpat=10, pf=1, ldack=0, cpos=1, early=0, abl='', lazy=6, schedQ=(), goQ=0, bw=16):
        self.schedQ = schedQ; self.goQ = goQ; self.bw = bw
        self.cpos = cpos; self.early = early; self.abl = abl; self.lazy = lazy
        self.pf = pf; self.ldack = ldack
        self.diag = diag; self.sched = sched; self.schedA = schedA; self.goP = goP; self.goA = goA; self.wqd = wqd; self.p2d = p2d; self.cpat = cpat
        self.a = Asm(); self.nt = nt; self.D = D; self.DB = DB; self.stamps = stamps; self.round_s = round_s
        self.ccount = 0
    def P(self, ch):
        return '' if ch in self.abl.upper().lower() and ch.upper() in self.abl else 'nt'
    def stamp(self, i):
        if not self.stamps: return
        a = self.a
        a("s_memrealtime vcc")
        a("s_waitcnt lgkmcnt(0)")
        a(f"v_writelane_b32 v12, vcc_lo, {i}")
    def stamp_dyn(self):
        if not self.stamps: return
        a = self.a
        a("s_memrealtime vcc")
        a("s_mov_b32 m0, s52")
        a("s_waitcnt lgkmcnt(0)")
        a("v_writelane_b32 v12, vcc_lo, m0")
        a("s_add_u32 s52, s52, 1")
    def srd(self, d, p, nbytes, off=None):
        a = self.a
        if off is None:
            a(f"s_mov_b32 s{d}, s{p}"); a(f"s_mov_b32 s{d+1}, s{p+1}")
        else:
            a(f"s_add_u32 s{d}, s{p}, {off}"); a(f"s_addc_u32 s{d+1}, s{p+1}, 0")
        a(f"s_mov_b32 s{d+2}, {nbytes}"); a(f"s_mov_b32 s{d+3}, 0x00020000")
    def lds_signal(self, addr):
        a = self.a
        a("s_waitcnt lgkmcnt(0)")
        a("s_mov_b64 exec, 1")
        a(f"ds_add_u32 v2, v3 offset:{addr - FLG}")
        a("s_mov_b64 exec, -1")
    def lds_signal_w(self, addr):
        a = self.a
        a("s_lshl_b32 s32, s3, 2"); a("v_add_u32 v13, s32, v2")
        a("s_mov_b64 exec, 1")
        a(f"ds_add_u32 v13, v3 offset:{addr - FLG}")
        a("s_mov_b64 exec, -1")
    def lds_wait(self, addr, target, sleep=0, perwave=False):
        a = self.a
        av = 2
        if perwave:
            a("s_lshl_b32 s32, s3, 2"); a("v_add_u32 v15, s32, v2"); av = 15
        L = a.newlabel("LW"); E = a.newlabel("LE")
        a(f"s_mov_b32 s33, {SPIN}")
        a.label(L)
        a(f"ds_read_b32 v13, v{av} offset:{addr - FLG}")
        a("s_sub_u32 s33, s33, 1")
        a(f"s_cbranch_scc1 {E}")
        a("s_waitcnt lgkmcnt(0)")
        a("v_readfirstlane_b32 s32, v13")
        a(f"s_cmp_ge_u32 s32, {target}")
        if sleep:
            a(f"s_cbranch_scc1 {E}")
            a(f"s_sleep {sleep}")
            a(f"s_branch {L}")
        else:
            a(f"s_cbranch_scc0 {L}")
        a.label(E)
        a("s_waitcnt lgkmcnt(0)")
    def csync(self):
        self.ccount += 4
        self.lds_signal(F_C)
        self.lds_wait(F_C, self.ccount)
    def spoll(self, nx16, soff, imm, mask, want, lazy=0, sleep=0):
        a = self.a
        L = a.newlabel("SP"); E = a.newlabel("SE")
        a(f"s_mov_b32 s33, {SPIN//8}")
        a.label(L)
        for i in range(nx16):
            a(f"s_load_dwordx16 s[{36+16*i}:{51+16*i}], s[12:13], {soff} offset:{imm+64*i} glc")
        a("s_sub_u32 s33, s33, 1")
        a(f"s_cbranch_scc1 {E}")
        a("s_waitcnt lgkmcnt(0)")
        if lazy:
            K = a.newlabel("SK")
            a(f"s_cmp_eq_u32 s36, {want}"); a(f"s_cbranch_scc1 {K}")
            a(f"s_cmp_eq_u32 s43, {want}"); a(f"s_cbranch_scc1 {K}")
            a(f"s_sleep {lazy}"); a(f"s_branch {L}")
            a.label(K)
        n = 8 * nx16
        a("s_and_b64 s[28:29], s[36:37], s[38:39]")
        a("s_or_b64 s[30:31], s[36:37], s[38:39]")
        for i in range(2, n):
            a(f"s_and_b64 s[28:29], s[28:29], s[{36+2*i}:{37+2*i}]")
            a(f"s_or_b64 s[30:31], s[30:31], s[{36+2*i}:{37+2*i}]")
        a("s_and_b32 s28, s28, s29")
        a("s_or_b32 s30, s30, s31")
        a(f"s_xor_b32 s28, s28, {want}")
        a(f"s_xor_b32 s30, s30, {want}")
        a("s_or_b32 s28, s28, s30")
        a(f"s_and_b32 s28, s28, {mask}")
        if sleep:
            a(f"s_cbranch_scc0 {E}"); a(f"s_sleep {sleep}"); a(f"s_branch {L}")
        else:
            a(f"s_cbranch_scc1 {L}")
        a.label(E)
        a("s_waitcnt lgkmcnt(0)")
    def vcheck(self, regs, mask, want, acc=14, first=True):
        a = self.a
        tmp = acc + 1
        a(f"v_xor_b32 v{tmp}, {want}, v{regs[0]}")
        for r in regs[1:]:
            a(f"v_bitop3_b32 v{tmp}, v{r}, {want}, v{tmp} bitop3:0xbe")
        if first:
            a(f"v_and_b32 v{acc}, {mask}, v{tmp}")
        else:
            a(f"v_and_b32 v{tmp}, {mask}, v{tmp}")
            a(f"v_or_b32 v{acc}, v{acc}, v{tmp}")
    def allred16(self, op, v):
        for n in (8, 4, 2, 1):
            self.a(f"{op} v{v}, v{v}, v{v} row_ror:{n} row_mask:0xf bank_mask:0xf")
    def xred(self, op, v, t, which):
        a = self.a
        a(f"v_mov_b32 v{t}, v{v}")
        a(f"v_permlane{which}_swap_b32 v{v}, v{t}")
        a(f"{op} v{v}, v{v}, v{t}")
    def tagpack(self, d, x0, x1):
        a = self.a
        a(f"v_perm_b32 v{d}, v{x1}, v{x0}, v16")
        a(f"v_add_u32 v{d}, s19, v{d}")
        a(f"v_and_or_b32 v{d}, v{d}, v17, s18")
    def red8(self, dst):
        a = self.a
        for cw in range(4):
            for rho in range(2):
                a(f"ds_read_b32 v{20+2*cw+rho}, v18 offset:{cw*1024 + rho*640}")
        a("s_waitcnt lgkmcnt(0)")
        a("v_add_f32 v20, v20, v21"); a("v_add_f32 v22, v22, v23"); a("v_add_f32 v24, v24, v25"); a("v_add_f32 v26, v26, v27")
        a("v_add_f32 v20, v20, v22"); a("v_add_f32 v24, v24, v26")
        a(f"v_add_f32 v{dst}, v20, v24")
    def w16_loads(self, ptr, rowfn, lanerows, s_rg, s_cg):
        a = self.a
        self.srd(4, ptr, 4096*896)
        a("v_lshrrev_b32 v20, 4, v1")
        a(f"v_mul_u32_u24 v20, {lanerows*896}, v20")
        a("v_and_b32 v21, 15, v1")
        a("v_lshl_add_u32 v20, v21, 4, v20")
        a(f"s_cmp_eq_u32 {s_cg}, 3")
        a("s_cselect_b32 s28, 8, 16")
        a("v_cmp_le_u32 vcc, s28, v21")
        a("v_mov_b32 v21, 0x7ff00000")
        a("v_cndmask_b32 v20, v20, v21, vcc")
        a(f"s_mul_i32 s28, {s_rg}, {64*896}")
        a(f"s_lshl_b32 s29, {s_cg}, 8")
        a("s_add_u32 s28, s28, s29")
        for t in range(16):
            a(f"s_add_u32 s29, s28, {rowfn(t)*896}")
            a(f"buffer_load_dwordx4 {vr(192+4*t)}, v20, s[4:7], s29 offen {self.nt}")
    def publish_out(self, P, acc, s_rg, s_cg):
        a = self.a
        for r in range(4):
            a(f"v_and_or_b32 v{20+r}, v{acc+r}, v19, s17")
        a("v_lshrrev_b32 v24, 4, v1"); a("v_lshlrev_b32 v24, 7, v24")
        a("v_and_b32 v25, 7, v1"); a("v_lshl_add_u32 v24, v25, 4, v24")
        a(f"s_lshl_b32 s28, {s_rg}, 11"); a(f"s_lshl_b32 s29, {s_cg}, 9"); a("s_add_u32 s28, s28, s29")
        a(f"s_add_u32 s28, s28, {OUTP + P*131072}")
        a("s_mov_b32 exec_lo, 0x00ff00ff")
        a(f"s_cmp_eq_u32 {s_cg}, 3")
        a("s_cselect_b32 exec_hi, 0, 0x00ff00ff")
        a(f"buffer_store_dwordx4 v[20:23], v24, s[12:15], s28 offen sc1")
        a("s_mov_b64 exec, -1")
    def reduce_out(self, P, s_n):
        a = self.a
        L = a.newlabel("RO"); E = a.newlabel("RE")
        a("v_lshlrev_b32 v24, 11, v1")
        a(f"s_lshl_b32 s28, {s_n}, 4"); a(f"s_add_u32 s28, s28, {OUTP + P*131072}")
        a(f"s_mov_b32 s33, {SPIN//8}")
        a.label(L)
        a("buffer_load_dwordx4 v[20:23], v24, s[12:15], s28 offen sc1")
        a("s_sub_u32 s33, s33, 1")
        a(f"s_cbranch_scc1 {E}")
        a("s_waitcnt vmcnt(0)")
        self.vcheck([20, 21, 22, 23], "0xff", "s17")
        a("v_cmp_ne_u32 vcc, 0, v14")
        a(f"s_cbranch_vccnz {L}")
        a.label(E)
        a("s_waitcnt vmcnt(0)")
        for r in range(4): a(f"v_and_b32 v{20+r}, v19, v{20+r}")
        a("v_permlane32_swap_b32 v20, v21"); a("v_permlane32_swap_b32 v22, v23")
        a("v_add_f32 v20, v20, v21"); a("v_add_f32 v22, v22, v23")
        a("v_permlane16_swap_b32 v20, v22")
        a("v_add_f32 v20, v20, v22")
        self.allred16("v_add_f32", 20)
        a("v_cvt_pk_bf16_f32 v20, v20, v20")
        a("v_lshrrev_b32 v21, 4, v1")
        a("v_lshlrev_b32 v22, 1, v21"); a("v_and_b32 v22, 2, v22"); a("v_lshrrev_b32 v21, 1, v21"); a("v_or_b32 v21, v21, v22")
        a("v_lshlrev_b32 v21, 4, v21")
        a(f"s_lshr_b32 s28, {s_n}, 3"); a("s_lshl_b32 s28, s28, 5"); a(f"s_and_b32 s29, {s_n}, 7"); a("s_add_u32 s28, s28, s29")
        a("s_lshl_b32 s28, s28, 1"); a(f"s_add_u32 s28, s28, {(0 if P == 0 else 448)*2}")
        self.srd(8, 26, 1792)
        a("s_mov_b32 exec_lo, 0x00010001"); a("s_mov_b32 exec_hi, 0x00010001")
        a("buffer_store_short v20, v21, s[8:11], s28 offen")
        a("s_mov_b64 exec, -1")
    def diag_spin(self, idx):
        a = self.a
        L = a.newlabel("DG")
        a("v_readlane_b32 s36, v12, 0"); a(f"v_readlane_b32 s37, v12, {idx}")
        a("s_cmp_eq_u32 s37, 0"); a("s_cselect_b32 s37, s36, s37")
        a("s_sub_u32 s37, s37, s36"); a("s_mul_i32 s37, s37, 10"); a("s_add_u32 s37, s37, 20000")
        a.label(L)
        a("s_sleep 8")
        a("s_memrealtime vcc"); a("s_waitcnt lgkmcnt(0)")
        a("s_sub_u32 s38, vcc_lo, s36"); a("s_cmp_lt_u32 s38, s37"); a(f"s_cbranch_scc1 {L}")
    def dump_stamps(self, slot):
        if not self.stamps: return
        a = self.a
        a("v_lshlrev_b32 v20, 2, v1")
        a("s_lshl_b32 s28, s2, 8"); a(f"s_add_u32 s28, s28, {WS_STAMP + (0, 128, 192)[slot]}")
        a("s_mov_b32 exec_hi, 0"); a("s_mov_b32 exec_lo, " + ("-1" if slot == 0 else "0xffff"))
        a("buffer_store_dword v12, v20, s[12:15], s28 offen")
        a("s_mov_b64 exec, -1")

    def build(self):
        a = self.a
        a.raw(f"; @launch grid=(256,1,1) block=(512,1,1) lds={LDS_BYTES}")
        a.raw('.amdgcn_target "amdgcn-amd-amdhsa--gfx950"')
        a.raw(".text"); a.raw(f".globl {NAME}_kernel"); a.raw(".p2align 8"); a.raw(f".type {NAME}_kernel,@function"); a.raw(f"{NAME}_kernel:")
        a("s_cmp_ge_u32 s2, 256"); a("s_cbranch_scc1 L_end")
        if self.stamps: a("s_memrealtime s[98:99]")
        a("s_load_dwordx16 s[36:51], s[0:1], 0")
        a("s_load_dwordx8 s[52:59], s[0:1], 64")
        a("s_load_dwordx4 s[60:63], s[0:1], 96")
        a("v_and_b32 v1, 63, v0")
        a("v_lshrrev_b32 v13, 6, v0")
        a("v_mov_b32 v12, 0")
        a("v_readfirstlane_b32 s3, v13")
        a(f"v_mov_b32 v2, {FLG}")
        a("v_mov_b32 v3, 1")
        a("s_lshr_b32 s100, s2, 5"); a("s_lshl_b32 s100, s100, 3"); a("s_and_b32 s28, s2, 7"); a("s_add_u32 s100, s100, s28")
        a("s_bfe_u32 s101, s2, 0x20003")
        if self.pf:
            a("s_cmp_lg_u32 s3, 3"); a("s_cbranch_scc1 L_nopf")
            a("s_getpc_b64 s[4:5]")
            a("s_and_b32 s4, s4, 0xffffff00")
            a("s_mov_b32 s6, CODE_BYTES"); a("s_mov_b32 s7, 0x00020000")
            a("s_lshr_b32 s28, s2, 3"); a("s_and_b32 s28, s28, 7"); a("s_lshl_b32 s28, s28, 13")
            a("v_lshlrev_b32 v14, 7, v1")
            a("buffer_load_dword v255, v14, s[4:7], s28 offen")
            a.label("L_nopf")
        a("s_waitcnt lgkmcnt(0)")
        self.srd(12, 62, WS_BYTES)
        if self.stamps: a("v_writelane_b32 v12, s98, 0")
        self.stamp(9)
        a("s_load_dword s16, s[12:13], 0")
        a("s_mov_b64 s[26:27], s[58:59]")
        a("s_cmp_lt_u32 s3, 4"); a("s_cbranch_scc1 L_S")
        self.cwave()
        a.label("L_S")
        self.swave()
        a.label("L_end"); a("s_endpgm")
        a.raw("L_codeend:")
        a.raw(f".set CODE_BYTES, L_codeend - {NAME}_kernel")
        a.raw('.section .rodata,"a"'); a.raw(".p2align 6"); a.raw(f".amdhsa_kernel {NAME}_kernel")
        a.raw("  .amdhsa_next_free_vgpr 256"); a.raw("  .amdhsa_next_free_sgpr 102"); a.raw("  .amdhsa_accum_offset 256")
        a.raw("  .amdhsa_group_segment_fixed_size 0"); a.raw("  .amdhsa_kernarg_size 112"); a.raw("  .amdhsa_user_sgpr_count 2")
        a.raw("  .amdhsa_user_sgpr_kernarg_segment_ptr 1"); a.raw("  .amdhsa_system_sgpr_workgroup_id_x 1"); a.raw(".end_amdhsa_kernel")
        return a.text()

    def consts(self):
        a = self.a
        a("v_and_b32 v13, 1, v1")
        a("v_cmp_eq_u32 vcc, 1, v13")
        a("v_mov_b32 v14, 0x0c0c0100"); a("v_mov_b32 v15, 0x01000c0c")
        a("v_cndmask_b32 v14, v14, v15, vcc")
        a("v_mov_b32 v31, 0x0c0c0302"); a("v_mov_b32 v15, 0x03020c0c")
        a("v_cndmask_b32 v15, v31, v15, vcc")
        a("v_bfe_u32 v13, v1, 1, 2")
        a("v_mov_b32 v31, 0x0c0c0c0c")
        for w in range(4):
            a(f"v_cmp_eq_u32 vcc, {w}, v13")
            a(f"v_cndmask_b32 v{4+w}, v31, v14, vcc")
            a(f"v_cndmask_b32 v{8+w}, v31, v15, vcc")
        a("v_mov_b32 v16, 0x07060302")
        a("v_mov_b32 v17, 0xfffefffe")
        a("v_mov_b32 v19, 0xffffff00")
    def tags(self):
        a = self.a
        a("s_waitcnt lgkmcnt(0)")
        a("s_add_u32 s16, s16, 0x01010101")
        a("s_and_b32 s17, s16, 0xff")
        a("s_and_b32 s18, s16, 1")
        a("s_cselect_b32 s18, 0x00010001, 0")
        a("s_cselect_b32 s19, 0, 0x00010001")
    def swz(self, vd, vk, t):
        a = self.a
        a(f"v_and_b32 v{vd}, 7, v{vk}"); a(f"v_lshlrev_b32 v{vd}, 1, v{vd}")
        a(f"v_lshrrev_b32 v{t}, 3, v{vk}"); a(f"v_or_b32 v{vd}, v{vd}, v{t}")
    def row_addrs(self):
        a = self.a
        a("s_lshl_b32 s34, s3, 9")
        a("v_and_b32 v20, 15, v1"); self.swz(21, 20, 22)
        a("v_lshrrev_b32 v22, 4, v1"); a("v_lshlrev_b32 v22, 1, v22")
        a("v_xor_b32 v21, v21, v22"); a("v_lshlrev_b32 v21, 4, v21")
        a("v_lshl_add_u32 v21, v20, 11, v21"); a("v_add_u32 v21, s34, v21")
        for v in range(4):
            x = (8*(v >> 1) + (v & 1)) * 16
            a(f"v_xor_b32 v{112+v}, {x}, v21")
            a(f"v_add_u32 v{116+v}, 0x10000, v{112+v}")
    def row_read(self, dst, kb, t):
        u = t >> 1; v = (u & 1) * 2 + (t & 1)
        base = (112 if kb < 2 else 116) + v
        self.a(f"ds_read_b128 {vr(dst)}, v{base} offset:{(kb & 1)*32768 + (u >> 1)*256}")
    def tr_addrs(self):
        a = self.a
        a("s_lshl_b32 s34, s3, 9")
        a("v_lshrrev_b32 v20, 2, v1"); self.swz(21, 20, 22)
        a("v_bfe_u32 v22, v1, 1, 1"); a("v_xor_b32 v21, v21, v22"); a("v_lshlrev_b32 v21, 4, v21")
        a("v_and_b32 v22, 1, v1"); a("v_lshl_add_u32 v21, v22, 3, v21")
        a("v_lshl_add_u32 v21, v20, 11, v21"); a("v_add_u32 v21, s34, v21")
        for c in range(8):
            a(f"v_xor_b32 v{120+c}, {c*32}, v21")
    def tr_read(self, dst, cb, half):
        a = self.a
        base = 120 + (cb & 7)
        if half:
            t = 28 + (cb & 3)
            a(f"v_add_u32 v{t}, 0x10000, v{base}"); base = t
        a(f"ds_read_b64_tr_b16 v[{dst}:{dst+1}], v{base} offset:{(cb >> 3)*256}")
        a(f"ds_read_b64_tr_b16 v[{dst+2}:{dst+3}], v{base} offset:{(cb >> 3)*256 + 32768}")
    def qabs_gather(self, t3=False):
        a = self.a
        L = a.newlabel("QB"); E = a.newlabel("QBE")
        a("v_and_b32 v30, 15, v1"); a("v_lshlrev_b32 v30, 6, v30"); a("v_lshrrev_b32 v31, 4, v1"); a("v_lshl_add_u32 v30, v31, 4, v30")
        a("v_add_u32 v31, 0x1000, v30")
        a("s_lshl_b32 s35, s3, 13"); a(f"s_add_u32 s35, s35, {QABS}")
        def lds():
            for t in range(8):
                a(f"buffer_load_dwordx4 {vr(32+4*t)}, v{30+(t>>2)}, s[12:15], s35 offen offset:{1024*(t&3)} sc1")
        lds()
        if t3:
            a("s_waitcnt vmcnt(8)")
            self.lds_signal(F_T3)
        a(f"s_mov_b32 s33, {SPIN//8}")
        a.label(L)
        a("s_waitcnt vmcnt(0)")
        self.vcheck(list(range(32, 64)), "1", "s18")
        a("v_cmp_ne_u32 vcc, 0, v14")
        a(f"s_cbranch_vccz {E}")
        a("s_sub_u32 s33, s33, 1")
        a(f"s_cbranch_scc1 {E}")
        lds()
        a(f"s_branch {L}")
        a.label(E)
    def exch(self, tile, mid=None):
        a = self.a
        if mid == "main": return self.exch_main(tile)
        a("v_lshlrev_b32 v24, 4, v1"); a(f"v_add_u32 v24, {PS + tile*12288}, v24")
        a("s_mul_i32 s34, s3, 3072"); a("v_add_u32 v25, s34, v24")
        a("v_and_b32 v27, 15, v1"); a("v_lshlrev_b32 v27, 5, v27"); a(f"v_add_u32 v27, {MX}, v27")
        a("s_lshl_b32 s34, s3, 2"); a("v_add_u32 v28, s34, v27")
        a("s_lshl_b32 s34, s3, 9"); a(f"s_add_u32 s34, s34, {PB + tile*2048}"); a("v_lshl_add_u32 v29, v1, 3, s34")
    def exch_main(self, tile):
        a = self.a
        a(f"s_mov_b32 s35, {CEXP:#x}")
        J = a.newlabel("XJ"); Ls = [a.newlabel("XV") for _ in range(4)]
        a.settle(8)
        for w in range(3):
            a(f"s_cmp_eq_u32 s3, {w}"); a(f"s_cbranch_scc1 {Ls[w]}")
        for w in (3, 0, 1, 2):
            a.label(Ls[w])
            for kb in range(4):
                if kb != w:
                    a(f"ds_write_b128 v24, {vr(96+4*kb)} offset:{kb*3072 + ((w-kb-1) & 3)*1024}")
            for r in range(4): a(f"v_mov_b32 v{20+r}, v{96+4*w+r}")
            if w != 2: a(f"s_branch {J}")
        a.label(J)
        a("s_waitcnt lgkmcnt(0)"); a("s_barrier")
        for j in range(3): a(f"ds_read_b128 {vr(96+4*j)}, v25 offset:{1024*j}")
        a("s_waitcnt lgkmcnt(0)")
        for r in range(4):
            a(f"v_add_f32 v{20+r}, v{20+r}, v{96+r}"); a(f"v_add_f32 v{100+r}, v{100+r}, v{104+r}")
        for r in range(4): a(f"v_add_f32 v{20+r}, v{20+r}, v{100+r}")
        a("v_max3_f32 v26, v20, v21, v22"); a("v_max_f32 v26, v26, v23")
        self.xred("v_max_f32", 26, 30, 16); self.xred("v_max_f32", 26, 30, 32)
        a("s_mov_b64 exec, 0xffff")
        a(f"ds_write_b32 v28, v26 offset:{tile*16}")
        a("s_mov_b64 exec, -1")
        a("s_waitcnt lgkmcnt(0)"); a("s_barrier")
        a("ds_read_b128 v[96:99], v27"); a("ds_read_b128 v[100:103], v27 offset:16")
        a("s_waitcnt lgkmcnt(0)")
        a("v_max3_f32 v26, v96, v97, v98"); a("v_max3_f32 v30, v99, v100, v101"); a("v_max3_f32 v26, v26, v102, v103"); a("v_max_f32 v26, v26, v30")
        a("v_mul_f32 v26, s35, v26"); a("v_and_b32 v26, v19, v26")
        for r in range(4): a(f"v_fma_f32 v{20+r}, v{20+r}, s35, -v26")
        for r in range(4): a(f"v_exp_f32 v{20+r}, v{20+r}")
        a("v_cvt_pk_bf16_f32 v96, v20, v21"); a("v_cvt_pk_bf16_f32 v97, v22, v23")
        a("ds_write_b64 v29, v[96:97]")
        a("v_add_f32 v20, v20, v21"); a("v_add_f32 v22, v22, v23"); a("v_add_f32 v20, v20, v22")
        self.xred("v_add_f32", 20, 30, 16); self.xred("v_add_f32", 20, 30, 32)
        a("s_mov_b64 exec, 0xffff")
        a(f"ds_write_b32 v28, v20 offset:{LB - MX + tile*16}")
        a("s_mov_b64 exec, -1")
        a("s_waitcnt lgkmcnt(0)"); a("s_barrier")

    def p2_stage(self, rh):
        a = self.a; nt = self.nt
        self.srd(4, 52, 8 << 20)
        a("v_lshrrev_b32 v21, 5, v1"); a("v_and_b32 v20, 31, v1"); a("v_xor_b32 v20, v20, v21"); a("v_lshlrev_b32 v20, 4, v20")
        a("v_lshl_add_u32 v20, v21, 13, v20")
        a("s_and_b32 s28, s2, 3"); a("s_lshl_b32 s28, s28, 21")
        a("s_bfe_u32 s29, s2, 0x40002"); a("s_lshl_b32 s29, s29, 9"); a("s_add_u32 s28, s28, s29")
        a("s_lshl_b32 s29, s3, 18"); a("s_add_u32 s28, s28, s29")
        if rh: a(f"s_add_u32 s28, s28, {128*8192}")
        a("s_lshl_b32 s29, s3, 14")
        for k in range(16):
            if k >= self.p2d: a(f"s_waitcnt vmcnt({self.p2d-1})")
            a(f"v_xor_b32 v21, {((2*k) & 15)*16}, v20")
            a(f"s_add_u32 m0, s29, {rh*65536 + k*1024}")
            a(f"buffer_load_dwordx4 v21, s[4:7], s28 offen {nt} lds")
            if k != 15: a(f"s_add_u32 s28, s28, {2*8192}")
            if k == self.p2d - 1:
                self.consts(); self.tags()
        a("s_lshl_b32 s28, s3, 10"); a(f"s_add_u32 s28, s28, {RED2 + rh*512}")
        a("v_add_u32 v24, s28, v1")
        a("v_and_b32 v20, 15, v1"); a("v_lshrrev_b32 v21, 4, v1"); a("v_xor_b32 v21, v21, v20")
        a("s_and_b32 s28, s3, 1"); a("s_lshl_b32 s28, s28, 3"); a("v_xor_b32 v21, s28, v21"); a("v_lshlrev_b32 v21, 4, v21")
        a("v_lshl_add_u32 v21, v20, 9, v21")
        a("s_lshr_b32 s28, s3, 1"); a("s_lshl_b32 s28, s28, 8")
        if rh: a("s_add_u32 s28, s28, 0x10000")
        a("v_add_u32 v25, s28, v21"); a("v_xor_b32 v26, 64, v25")
        a("s_bfe_u32 s34, s2, 0x40002"); a("s_lshl_b32 s34, s34, 2"); a("s_add_u32 s34, s34, s3"); a("s_lshl_b32 s34, s34, 8")
        if rh: a("s_add_u32 s34, s34, 0x8000")
        self.stamp(1)
        self.spoll(4, "s34", QREC, "0xffff", "s16")
        for i in range(32):
            a(f"s_pack_hh_b32_b16 s{36+i}, s{36+2*i}, s{37+2*i}")
        for g in range(4):
            lo = (0xffff << (16*g)) & 0xffffffff if g < 2 else 0
            hi = (0xffff << (16*(g-2))) & 0xffffffff if g >= 2 else 0
            a(f"s_mov_b32 exec_lo, {lo:#x}"); a(f"s_mov_b32 exec_hi, {hi:#x}")
            for t in range(2):
                for w in range(4):
                    a(f"v_mov_b32 v{32+4*t+w}, s{36+16*t+4*g+w}")
        a("s_mov_b64 exec, -1")
        self.stamp(2)
        a("s_waitcnt vmcnt(0)")
        a("s_barrier")
        for rb in range(8):
            for t in range(2):
                a(f"ds_read_b128 {vr(128+8*rb+4*t)}, v{25+t} offset:{8192*rb}")
        for rb in range(8):
            a(f"s_waitcnt lgkmcnt({14 - 2*rb})")
            for t in range(2):
                a(f"v_mfma_f32_16x16x32_bf16 {vr(40+4*rb)}, {vr(128+8*rb+4*t)}, {vr(32+4*t)}, {'0' if t == 0 else vr(40+4*rb)}")
        a("s_mov_b32 exec_lo, 0x00010001"); a("s_mov_b32 exec_hi, 0x00010001")
        for rb in range(8):
            a(f"ds_write_b128 v24, {vr(40+4*rb)} offset:{64*rb}")
        a("s_mov_b64 exec, -1")
    def wuv_loads(self):
        a = self.a; nt = self.nt
        self.srd(4, 20, 8 << 20)
        a("v_lshrrev_b32 v20, 3, v1"); a("v_lshlrev_b32 v20, 17, v20")
        a("v_and_b32 v21, 7, v1"); a("v_lshl_add_u32 v20, v21, 4, v20")
        a("s_and_b32 s28, s100, 3"); a("s_lshl_b32 s28, s28, 8")
        a("s_lshr_b32 s29, s3, 1"); a("s_lshl_b32 s29, s29, 7"); a("s_add_u32 s28, s28, s29")
        a("s_and_b32 s29, s3, 1"); a("s_lshl_b32 s29, s29, 3"); a("s_add_u32 s28, s28, s29")
        a("s_lshl_b32 s28, s28, 13")
        a("s_lshr_b32 s29, s100, 2"); a("s_lshl_b32 s29, s29, 9"); a("s_add_u32 s28, s28, s29")
        a("s_lshl_b32 s29, s101, 7"); a("s_add_u32 s28, s28, s29")
        for t in range(8):
            a(f"buffer_load_dwordx4 {vr(160+4*t)}, v20, s[4:7], s28 offen {nt}")
            if t != 7: a("s_add_u32 s28, s28, 8192")

    def cwave(self):
        a = self.a; nt = self.nt
        a("s_setprio 3")
        a("s_sub_u32 s3, s3, 4")
        a("s_mov_b64 s[20:21], s[54:55]")
        a("s_mov_b64 s[22:23], s[56:57]")
        a("s_cmp_ge_u32 s2, 192"); a("s_cbranch_scc1 C_B")
        a("s_cmp_ge_u32 s2, 128"); a("s_cbranch_scc1 C_A")
        a("s_cmp_lt_u32 s2, 64")
        a("s_cselect_b32 s4, s50, s42"); a("s_cselect_b32 s5, s51, s43")
        a("s_cselect_b32 s8, s46, s36"); a("s_cselect_b32 s9, s47, s37")
        a(f"s_mov_b32 s6, {448*8192}"); a("s_mov_b32 s7, 0x00020000")
        a("s_mov_b32 s10, 896"); a("s_mov_b32 s11, 0x00020000")
        a("v_lshrrev_b32 v20, 3, v1")
        a("v_mul_u32_u24 v21, 28, v20")
        a("s_mul_i32 s28, s3, 224")
        a("buffer_load_dwordx4 v[24:27], v21, s[8:11], s28 offen")
        a("buffer_load_dwordx3 v[28:30], v21, s[8:11], s28 offen offset:16")
        a(f"v_mul_u32_u24 v20, {14*8192}, v20")
        a("v_and_b32 v21, 7, v1")
        a("v_lshl_add_u32 v20, v21, 4, v20")
        a(f"s_mul_i32 s28, s3, {112*8192}")
        a("s_and_b32 s29, s2, 63"); a("s_lshl_b32 s29, s29, 7"); a("s_add_u32 s28, s28, s29")
        for t in range(14):
            if t <= self.wqd:
                K = a.newlabel("PD")
                a("s_cmp_lt_u32 s2, 64"); a(f"s_cbranch_scc1 {K}")
                a("s_waitcnt vmcnt(0)")
                a.label(K)
            a(f"buffer_load_dwordx4 {vr(192+4*t)}, v20, s[4:7], s28 offen {nt}")
            if t != 13: a("s_add_u32 s28, s28, 8192")
        self.consts()
        self.red8_addr()
        a("s_waitcnt vmcnt(14)")
        self.stamp(13)
        for t in range(14):
            for w in range(4):
                a(f"v_perm_b32 v{128+4*t+w}, v{24+t//2}, v{24+t//2}, v{(8 if t & 1 else 4)+w}")
        self.tags()
        a("s_lshl_b32 s28, s3, 10"); a(f"s_add_u32 s28, s28, {RED8}")
        a("v_lshl_add_u32 v31, v1, 4, s28")
        a("s_and_b32 s34, s16, 0xffff")
        a("v_mov_b32 v29, 0xffff0000")
        a("v_lshlrev_b32 v30, 2, v1")
        a("s_lshl_b32 s28, s2, 8"); a(f"s_add_u32 s28, s28, {QREC}"); a("s_add_u32 s29, s28, 0x8000")
        for t in range(14):
            a(f"s_waitcnt vmcnt({13 - t})")
            a(f"v_mfma_f32_16x16x32_bf16 v[96:99], {vr(192+4*t)}, {vr(128+4*t)}, {'0' if t == 0 else 'v[96:99]'}")
        a("ds_write_b128 v31, v[96:99]")
        a("s_waitcnt lgkmcnt(0)")
        a("s_barrier")
        a("s_cmp_lg_u32 s3, 0"); a("s_cbranch_scc1 C_P1done")
        self.red8(20)
        a("v_cvt_pk_bf16_f32 v20, v20, v20")
        a("v_and_or_b32 v20, v20, v29, s34")
        a("buffer_store_dword v20, v30, s[12:15], s28 offen sc1")
        a("s_cmp_ge_u32 s2, 64"); a("s_cbranch_scc1 C_P1done")
        a("buffer_store_dword v20, v30, s[12:15], s29 offen sc1")
        a.label("C_P1done")
        self.stamp(1)
        a("s_branch C_join")
        a.label("C_A")
        self.p2_stage(1)
        self.red8_addr()
        a("v_lshlrev_b32 v20, 4, v1"); a(f"v_add_u32 v20, {RED2}, v20")
        a("v_lshrrev_b32 v21, 4, v1"); a("v_lshlrev_b32 v21, 11, v21")
        a("v_bfe_u32 v30, v1, 1, 1"); a("v_lshl_add_u32 v21, v30, 10, v21")
        a("v_bfe_u32 v30, v1, 2, 2"); a("v_lshl_add_u32 v21, v30, 4, v21")
        a("v_and_b32 v30, 1, v1"); a("v_lshl_add_u32 v21, v30, 3, v21")
        a("v_lshlrev_b32 v30, 8, v1"); a("v_mov_b32 v31, s16")
        a("s_and_b32 s34, s2, 3"); a("s_lshl_b32 s34, s34, 13"); a("s_bfe_u32 s29, s2, 0x40002"); a("s_lshl_b32 s29, s29, 6")
        a("s_add_u32 s34, s34, s29"); a(f"s_add_u32 s34, s34, {QABS}")
        a("s_and_b32 s28, s2, 3"); a("s_lshl_b32 s28, s28, 6")
        a("s_bfe_u32 s29, s2, 0x40002"); a("s_lshl_b32 s29, s29, 2"); a("s_add_u32 s28, s28, s29")
        a(f"s_add_u32 s35, s28, {HQ}")
        a("s_and_b32 s28, s18, 1"); a("s_and_b32 s29, s19, 1")
        a("s_waitcnt lgkmcnt(0)")
        a("s_barrier")
        a("s_cmp_lg_u32 s3, 0"); a("s_cbranch_scc1 C_P2done")
        for dq in range(4):
            a(f"ds_read_b128 {vr(32+4*dq)}, v20 offset:{1024*dq}")
        a("s_waitcnt lgkmcnt(0)")
        for k in range(4):
            a(f"v_add_f32 v{32+k}, v{32+k}, v{36+k}"); a(f"v_add_f32 v{40+k}, v{40+k}, v{44+k}")
        for k in range(4): a(f"v_add_f32 v{32+k}, v{32+k}, v{40+k}")
        for k in range(2):
            a(f"v_cvt_pk_bf16_f32 v{33+2*k}, v{33+2*k}, v{33+2*k}")
            a(f"v_perm_b32 v{22+k}, v{33+2*k}, v{32+2*k}, v16")
            a(f"v_add_u32 v{22+k}, s29, v{22+k}")
            a(f"v_and_or_b32 v{22+k}, v{22+k}, -2, s28")
        a("buffer_store_dwordx2 v[22:23], v21, s[12:15], s34 offen sc1")
        a("s_mov_b64 exec, 0xff")
        a("buffer_store_dword v31, v30, s[12:15], s35 offen sc1")
        a("s_mov_b64 exec, -1")
        a.label("C_P2done")
        self.stamp(3)
        a("s_branch C_join")
        a.label("C_B")
        a("s_barrier")
        self.consts()
        self.red8_addr()
        self.tr_addrs(); self.row_addrs()
        self.tags()
        self.lds_wait(F_T0, 4, sleep=1)
        for cb in range(16): self.tr_read(128 + 8*cb, cb, 0)
        self.lds_signal(F_X0)
        self.stamp(1)
        self.lds_wait(F_T1, 4, sleep=1)
        for cb in range(16): self.tr_read(132 + 8*cb, cb, 1)
        self.lds_signal(F_X1)
        self.stamp(2)
        a.label("C_join")
        a.settle()
        a("s_cmp_eq_u32 s3, 1"); a("s_cbranch_scc1 C_q1")
        self.lds_signal(F_QA)
        a("s_branch C_q2")
        a.label("C_q1")
        a("s_bfe_u32 s34, s2, 0x30003"); a("s_lshl_b32 s34, s34, 3"); a("s_and_b32 s35, s2, 7"); a("s_add_u32 s34, s34, s35"); a("s_lshl_b32 s34, s34, 8")
        self.spoll(1, "s34", QREC + 0x4000 + 192, "0xffff", "s16", sleep=4)
        self.qa_issue()
        self.qa_finish()
        a.label("C_q2")
        a.settle()
        a("s_cmp_lt_u32 s2, 192"); a("s_cbranch_scc1 C_noB")
        self.battn()
        a("s_branch C_go")
        a.label("C_noB")
        self.lds_wait(F_GO, 1, sleep=4)
        a.label("C_go")
        a.settle()
        self.wuv_loads()
        a("s_cmp_lg_u32 s3, 1"); a("s_cbranch_scc1 C_noWo1")
        a("s_and_b32 s36, s100, 0x3c"); a("s_add_u32 s36, s36, s101"); a("s_and_b32 s37, s100, 3")
        self.w16_loads(22, lambda t: t, 16, "s36", "s37")
        a.label("C_noWo1")
        self.stamp(7)
        self.h4()

    def red8_addr(self):
        a = self.a
        a("v_lshrrev_b32 v22, 5, v1"); a("v_lshlrev_b32 v22, 8, v22")
        a("v_and_b32 v23, 7, v1"); a("v_lshl_add_u32 v22, v23, 4, v22")
        a("v_bfe_u32 v23, v1, 3, 2"); a("v_lshl_add_u32 v22, v23, 2, v22")
        a(f"v_add_u32 v18, {RED8}, v22")

    def qa_issue(self):
        a = self.a
        a("v_lshlrev_b32 v96, 4, v1")
        a("s_bfe_u32 s35, s2, 0x30003"); a("s_lshl_b32 s35, s35, 11"); a(f"s_add_u32 s35, s35, {QREC + 0x4000}")
        a("buffer_load_dwordx4 v[100:103], v96, s[12:15], s35 offen sc1")
        a("buffer_load_dwordx4 v[104:107], v96, s[12:15], s35 offen offset:1024 sc1")
    def qa_finish(self):
        a = self.a
        L = a.newlabel("QA"); E = a.newlabel("QE")
        a(f"s_mov_b32 s33, {SPIN//8}")
        a.label(L)
        a("s_waitcnt vmcnt(0)")
        self.vcheck(list(range(100, 108)), "0xffff", "s16")
        a("v_cmp_ne_u32 vcc, 0, v14")
        a(f"s_cbranch_vccz {E}")
        a("s_sub_u32 s33, s33, 1")
        a(f"s_cbranch_scc1 {E}")
        self.qa_issue()
        a(f"s_branch {L}")
        a.label(E)
        for i in range(4):
            a(f"v_perm_b32 v{20+i}, v{101+2*i}, v{100+2*i}, v16")
        a("v_lshlrev_b32 v24, 3, v1"); a(f"v_add_u32 v24, {QA}, v24")
        a("ds_write_b64 v24, v[20:21]")
        a("ds_write_b64 v24, v[22:23] offset:512")
        self.lds_signal(F_QA)

    def battn(self):
        a = self.a
        self.exch(1)
        a("s_and_b32 s34, s2, 7"); a("s_lshl_b32 s34, s34, 8"); a("s_lshl_b32 s35, s3, 6"); a("s_add_u32 s34, s34, s35")
        self.spoll(1, "s34", HQ, "-1", "s16")
        self.lds_signal_w(F_H)
        self.stamp(4)
        self.qabs_gather()
        self.stamp(5)
        self.lds_wait(F_T2, 4)
        seq = [(kb, t) for kb in range(4) for t in range(8)]
        NB = 8
        for half in range(2):
            if half: self.lds_wait(F_T3, 4)
            sq = seq[16*half:16*half+16]
            for i in range(NB): self.row_read(64+4*i, *sq[i])
            for i in range(16):
                kb, t = sq[i]
                issued = min(16, i + NB)
                a(f"s_waitcnt lgkmcnt({issued - 1 - i})")
                a(f"v_mfma_f32_16x16x32_bf16 {vr(96+4*kb)}, {vr(64+4*(i % NB))}, {vr(32+4*t)}, {'0' if t == 0 else vr(96+4*kb)}")
                if i + NB < 16: self.row_read(64+4*(i % NB), *sq[i+NB])
        self.stamp(6)
        self.exch(1, "main")
        a("v_lshlrev_b32 v24, 3, v1"); a(f"v_add_u32 v24, {PB}, v24")
        for x in range(8): a(f"ds_read_b64 v[{96+2*x}:{97+2*x}], v24 offset:{512*x}")
        a("v_lshrrev_b32 v25, 4, v1"); a("v_lshlrev_b32 v25, 19, v25")
        a("v_and_b32 v21, 15, v1"); a("v_lshl_add_u32 v25, v21, 4, v25")
        a("s_sub_u32 s36, s2, 192"); a("s_lshl_b32 s36, s36, 9")
        a("s_lshl_b32 s29, s3, 15"); a("s_add_u32 s36, s36, s29"); a(f"s_add_u32 s36, s36, {LREC}")
        for r in range(1, 4): a(f"s_add_u32 s{36+r}, s36, {r*4*32768}")
        a("s_cmp_lg_u32 s3, 0"); a("s_cbranch_scc1 C_noLST")
        a(f"ds_read_b128 v[112:115], v27 offset:{LB-MX}"); a(f"ds_read_b128 v[116:119], v27 offset:{LB-MX+16}")
        a("s_waitcnt lgkmcnt(0)")
        for r in range(4): a(f"v_add_f32 v{112+r}, v{112+r}, v{116+r}")
        a("v_add_f32 v112, v112, v113"); a("v_add_f32 v114, v114, v115"); a("v_add_f32 v112, v112, v114")
        a("v_or_b32 v22, s17, v26")
        a("v_and_or_b32 v23, v112, v19, s17")
        a("v_lshlrev_b32 v21, 9, v1")
        a("s_sub_u32 s28, s2, 192"); a("s_lshl_b32 s28, s28, 3"); a(f"s_add_u32 s28, s28, {LST}")
        a("s_mov_b64 exec, 0xffff")
        a("buffer_store_dwordx2 v[22:23], v21, s[12:15], s28 offen sc1")
        a("s_mov_b64 exec, -1")
        a.label("C_noLST")
        a("s_waitcnt lgkmcnt(0)")
        self.stamp(14)
        for cb in range(16):
            for s in range(2):
                a(f"v_mfma_f32_16x16x32_bf16 {vr(32+4*cb)}, {vr(96+4*s)}, {vr(128+8*cb+4*s)}, {'0' if s == 0 else vr(32+4*cb)}")
            for s in range(2): self.tr_read(128+8*cb+4*s, cb, s)
        def pack_store(r, half, b):
            for j in range(4):
                cb = 8*half + 2*j
                self.tagpack(b+j, 32+4*cb+r, 32+4*(cb+1)+r)
            if "s" not in self.abl: a(f"buffer_store_dwordx4 {vr(b)}, v25, s[12:15], s{36+r} offen offset:{256*half} sc1")
        for cb in range(16):
            a(f"s_waitcnt lgkmcnt({min(15, 4*(15-cb))})")
            for s in range(2):
                a(f"v_mfma_f32_16x16x32_bf16 {vr(32+4*cb)}, {vr(104+4*s)}, {vr(128+8*cb+4*s)}, {vr(32+4*cb)}")
            if cb >= 9 and cb & 1: pack_store((cb-9)//2, 0, 112 + 4*((cb-9)//2))
        for r in range(4): pack_store(r, 1, 128 + 4*r)
        a("v_lshlrev_b32 v21, 10, v1"); a("v_mov_b32 v23, s16")
        a("s_sub_u32 s28, s2, 192"); a("s_lshl_b32 s28, s28, 2"); a("s_lshl_b32 s29, s3, 8"); a("s_add_u32 s28, s28, s29")
        a(f"s_add_u32 s28, s28, {HL}")
        a("s_mov_b64 exec, 0xff")
        a("buffer_store_dword v23, v21, s[12:15], s28 offen sc1")
        a("s_mov_b64 exec, -1")
        self.stamp(15)
        if self.ldack: a("s_waitcnt vmcnt(0)")
        self.lds_signal(F_LD)

    def wpack(self, d, x, t):
        a = self.a
        a(f"v_cvt_pk_bf16_f32 v{t}, v{x}, v{x}"); a(f"v_lshlrev_b32 v{t}, 16, v{t}"); a(f"v_sub_f32 v{t}, v{x}, v{t}")
        a(f"v_cvt_pk_bf16_f32 v{d}, v{x}, v{t}")
    def lweights(self, steps):
        a = self.a
        for i in range(8): a(f"v_and_b32 v{64+i}, v19, v{64+i}")
        a("v_max3_f32 v72, v64, v66, v68"); a("v_max_f32 v72, v72, v70")
        def red(op, v):
            if steps == 3: a(f"{op} v{v}, v{v}, v{v} row_ror:8 row_mask:0xf bank_mask:0xf")
            self.xred(op, v, 74, 16); self.xred(op, v, 74, 32)
        red("v_max_f32", 72)
        for i in range(4): a(f"v_sub_f32 v{64+2*i}, v{64+2*i}, v72")
        for i in range(4): a(f"v_exp_f32 v{64+2*i}, v{64+2*i}")
        a("v_mul_f32 v73, v64, v65")
        for i in range(1, 4): a(f"v_fmac_f32 v73, v{64+2*i}, v{65+2*i}")
        for i in range(4): a(f"v_cvt_pk_bf16_f32 v{65+2*i}, v{64+2*i}, v{64+2*i}")
        for i in range(4): a(f"v_lshlrev_b32 v{65+2*i}, 16, v{65+2*i}")
        for i in range(4): a(f"v_sub_f32 v{65+2*i}, v{64+2*i}, v{65+2*i}")
        for i in range(4): a(f"v_cvt_pk_bf16_f32 v{64+2*i}, v{64+2*i}, v{65+2*i}")
        return red

    def h4(self):
        a = self.a
        a("v_lshrrev_b32 v29, 4, v1"); a("v_lshlrev_b32 v30, 11, v29"); a("v_and_b32 v31, 15, v1"); a("v_lshl_add_u32 v30, v31, 4, v30")
        a("v_lshlrev_b32 v29, 5, v29")
        a("v_and_b32 v20, 8, v1"); a("v_cmp_ne_u32 vcc, 0, v20")
        for w in range(4): a(f"v_cndmask_b32 v{80+w}, v{4+w}, v{8+w}, vcc")
        a("s_lshl_b32 s28, s3, 3"); a(f"s_add_u32 s28, s28, {WST}"); a("v_mov_b32 v84, s28")
        a(f"v_mov_b32 v31, {WST}")
        a("s_lshl_b32 s28, s3, 11"); a(f"s_add_u32 s28, s28, {REDL}"); a("v_lshl_add_u32 v85, v1, 4, s28")
        a("s_lshr_b32 s28, s3, 1"); a("s_lshl_b32 s28, s28, 10"); a("s_and_b32 s29, s3, 1"); a("s_lshl_b32 s29, s29, 9"); a("s_add_u32 s28, s28, s29")
        a(f"s_add_u32 s28, s28, {REDL}")
        a("v_lshrrev_b32 v86, 3, v1"); a("v_lshl_add_u32 v86, v86, 4, s28")
        a("s_lshl_b32 s28, s3, 10"); a(f"s_add_u32 s28, s28, {RED8}"); a("v_lshl_add_u32 v87, v1, 4, s28")
        a("s_bfe_u32 s34, s100, 0x30002"); a("s_lshl_b32 s34, s34, 10")
        a("s_and_b32 s35, s100, 3"); a("s_lshl_b32 s35, s35, 8"); a("s_add_u32 s34, s34, s35")
        a("s_lshl_b32 s35, s3, 6"); a("s_add_u32 s34, s34, s35")
        a("s_lshl_b32 s60, s100, 15"); a("s_lshl_b32 s35, s3, 13"); a("s_add_u32 s60, s60, s35"); a(f"s_add_u32 s60, s60, {LREC}")
        a("s_lshr_b32 s61, s100, 2"); a("s_lshl_b32 s61, s61, 9"); a("s_lshl_b32 s35, s3, 7"); a("s_add_u32 s61, s61, s35"); a(f"s_add_u32 s61, s61, {LST}")
        self.spoll(1, "s34", HL, "-1", "s16", lazy=self.lazy)
        self.stamp(8)
        L = a.newlabel("G4"); E = a.newlabel("G4E")
        a(f"s_mov_b32 s36, {SPIN//8}")
        a.label(L)
        a("buffer_load_dwordx4 v[64:67], v29, s[12:15], s61 offen sc1")
        a("buffer_load_dwordx4 v[68:71], v29, s[12:15], s61 offen offset:16 sc1")
        for tt in range(4):
            for half in range(2):
                if "l" not in self.abl: a(f"buffer_load_dwordx4 {vr(32+8*tt+4*half)}, v30, s[12:15], s60 offen offset:{tt*512 + half*256} sc1")
        a("s_waitcnt vmcnt(8)" if "l" not in self.abl else "s_waitcnt vmcnt(0)")
        self.vcheck(list(range(64, 72)), "0xff", "s17")
        red = self.lweights(2)
        red("v_add_f32", 73)
        for tt in range(4):
            for w in range(4):
                a(f"v_perm_b32 v{88+4*tt+w}, v{64+2*tt}, v{64+2*tt}, v{80+w}")
        a("s_waitcnt vmcnt(0)")
        for tt in range(4):
            for half in range(2):
                a(f"v_mfma_f32_16x16x32_bf16 {vr(104+4*half)}, {vr(32+8*tt+4*half)}, {vr(88+4*tt)}, {'0' if tt == 0 else vr(104+4*half)}")
        if "s" not in self.abl and "l" not in self.abl: self.vcheck(list(range(32, 64)), "0x00010001", "s18", first=False)
        a("v_cmp_ne_u32 vcc, 0, v14")
        a(f"s_cbranch_vccz {E}")
        a("s_sub_u32 s36, s36, 1")
        a(f"s_cbranch_scc0 {L}")
        a.label(E)
        self.stamp(9)
        a("ds_write_b128 v85, v[104:107]")
        a("ds_write_b128 v85, v[108:111] offset:1024")
        a("s_mov_b64 exec, 1")
        a("ds_write_b64 v84, v[72:73]")
        a("s_mov_b64 exec, -1")
        self.csync()
        a("ds_read_b128 v[64:67], v31"); a("ds_read_b128 v[68:71], v31 offset:16")
        for tq in range(2):
            for w in range(4):
                for sel in range(2):
                    a(f"ds_read_b128 {vr(96 + 32*tq + 8*w + 4*sel)}, v86 offset:{2048*w + 256*tq + 128*sel}")
        a("s_waitcnt lgkmcnt(15)")
        a("v_max3_f32 v72, v64, v66, v68"); a("v_max_f32 v72, v72, v70")
        for i in range(4): a(f"v_sub_f32 v{64+2*i}, v{64+2*i}, v72")
        for i in range(4): a(f"v_exp_f32 v{64+2*i}, v{64+2*i}")
        a("v_mul_f32 v73, v64, v65")
        for i in range(1, 4): a(f"v_fmac_f32 v73, v{64+2*i}, v{65+2*i}")
        a("v_rcp_f32 v73, v73")
        for i in range(4): a(f"v_mul_f32 v{64+2*i}, v{64+2*i}, v73")
        for tq in range(2):
            a(f"s_waitcnt lgkmcnt({8*(1-tq)})")
            b = 96 + 32*tq
            for w in range(4):
                for i in range(4): a(f"v_add_f32 v{b+8*w+i}, v{b+8*w+i}, v{b+8*w+4+i}")
            for i in range(4): a(f"v_mul_f32 v{b+i}, v64, v{b+i}")
            for w in range(1, 4):
                for i in range(4): a(f"v_fmac_f32 v{b+i}, v{64+2*w}, v{b+8*w+i}")
            a(f"v_cvt_pk_bf16_f32 v{76+2*tq}, v{b}, v{b+1}"); a(f"v_cvt_pk_bf16_f32 v{77+2*tq}, v{b+2}, v{b+3}")
            for t in range(4*tq, 4*tq+4):
                for w in range(4):
                    a(f"v_perm_b32 v{32+4*t+w}, v{76+t//2}, v{76+t//2}, v{(8 if t & 1 else 4)+w}")
            for t in range(4*tq, 4*tq+4):
                a(f"v_mfma_f32_16x16x32_bf16 v[72:75], {vr(160+4*t)}, {vr(32+4*t)}, {'0' if t == 0 else 'v[72:75]'}")
        a("ds_write_b128 v87, v[72:75]")
        self.ccount += 4
        self.lds_signal(F_C)
        a("s_and_b32 s34, s100, 0x3c"); a("s_add_u32 s34, s34, s101"); a("s_lshl_b32 s34, s34, 9")
        a("s_cmp_lg_u32 s3, 0"); a("s_cbranch_scc1 C_H5")
        a("v_lshlrev_b32 v30, 1, v1")
        a("s_and_b32 s35, s100, 3"); a("s_lshl_b32 s35, s35, 7"); a("s_add_u32 s35, s35, s34"); a(f"s_add_u32 s35, s35, {CTX}")
        a(f"v_add_u32 v31, {CT}, v30")
        self.lds_wait(F_C, self.ccount)
        self.red8(28)
        a("v_mov_b32 v29, v28 quad_perm:[1,0,3,2] row_mask:0xf bank_mask:0xf")
        self.tagpack(28, 28, 29)
        a("s_mov_b32 exec_lo, 0x55555555"); a("s_mov_b32 exec_hi, 0x55555555")
        a("buffer_store_dword v28, v30, s[12:15], s35 offen sc1")
        a("ds_write_b32 v31, v28")
        a("s_mov_b64 exec, -1")
        self.lds_signal(F_CT)
        self.stamp(10)
        self.dump_stamps(1)
        a("s_endpgm")
        a.label("C_H5")
        a("s_add_u32 s35, s100, s3"); a("s_and_b32 s35, s35, 3"); a("s_lshl_b32 s35, s35, 7"); a("s_add_u32 s34, s34, s35")
        self.spoll(2, "s34", CTX, "0x00010001", "s18")
        a("v_mov_b32 v20, 0")
        for i in range(32):
            a(f"v_writelane_b32 v20, s{36+i}, {i}")
        a("s_lshl_b32 s28, s3, 7"); a(f"s_add_u32 s28, s28, {CT}")
        a("v_lshl_add_u32 v21, v1, 2, s28")
        a("s_mov_b32 exec_hi, 0")
        a("ds_write_b32 v21, v20")
        a("s_mov_b64 exec, -1")
        self.lds_signal(F_CT)
        a("s_cmp_lg_u32 s3, 1"); a("s_cbranch_scc1 L_end")
        a("v_and_b32 v21, 31, v1"); a("v_lshlrev_b32 v21, 2, v21"); a(f"v_add_u32 v21, {CT}, v21")
        a("v_lshrrev_b32 v22, 4, v1"); a("v_lshlrev_b32 v22, 5, v22"); a(f"v_add_u32 v22, {CT2}, v22")
        self.lds_wait(F_CT, 4)
        for k in range(4): a(f"ds_read_b32 v{24+k}, v21 offset:{128*k}")
        a("s_waitcnt lgkmcnt(0)")
        for k in range(4):
            a(f"v_lshlrev_b32 v{28+k}, 16, v{24+k}"); a(f"v_and_b32 v{24+k}, 0xffff0000, v{24+k}")
        a("v_add_f32 v28, v28, v29"); a("v_add_f32 v30, v30, v31"); a("v_add_f32 v24, v24, v25"); a("v_add_f32 v26, v26, v27")
        a("v_add_f32 v28, v28, v30"); a("v_add_f32 v24, v24, v26")
        a("v_cvt_pk_bf16_f32 v24, v28, v24")
        a(f"ds_write_b32 v21, v24 offset:{CT2-CT}")
        a("s_waitcnt lgkmcnt(0)")
        a("ds_read_b128 v[24:27], v22"); a("ds_read_b128 v[28:31], v22 offset:16")
        a("s_waitcnt lgkmcnt(0) vmcnt(0)")
        self.gemv16(24)
        self.stamp(10)
        self.lds_wait(F_SD, 4, sleep=2)
        a("s_and_b32 s34, s100, 0x3c"); a("s_add_u32 s34, s34, s101"); a("s_and_b32 s35, s100, 3")
        self.publish_out(1, 96, "s34", "s35")
        self.stamp(11)
        a("s_cmp_lt_u32 s2, 128"); a("s_cbranch_scc1 C_1end")
        a("s_cmp_ge_u32 s2, 240"); a("s_cbranch_scc1 C_1end")
        a("s_sub_u32 s34, s2, 128")
        self.reduce_out(1, "s34")
        a.label("C_1end")
        self.stamp(12)
        if self.diag is not None and self.diag >= 100: self.diag_spin(self.diag - 100)
        self.dump_stamps(2)
        a("s_endpgm")

    def gemv16(self, src):
        a = self.a
        def prep(t):
            for w in range(4):
                a(f"v_perm_b32 v{32+4*t+w}, v{src+t//2}, v{src+t//2}, v{(8 if t & 1 else 4)+w}")
        prep(0)
        for t in range(16):
            if t < 15: prep(t+1)
            a(f"v_mfma_f32_16x16x32_bf16 v[96:99], {vr(192+4*t)}, {vr(32+4*t)}, {'0' if t == 0 else 'v[96:99]'}")

    def tail(self):
        a = self.a
        a(f"v_add_u32 v101, {MRG}, v18")
        a("v_and_b32 v102, 15, v1"); a("v_lshlrev_b32 v102, 3, v102"); a(f"v_add_u32 v102, {MRGS}, v102")
        self.lds_wait(F_SD, 4)
        self.stamp(11)
        for w in range(4):
            a(f"ds_read_b64 v[{64+2*w}:{65+2*w}], v102 offset:{128*w}")
        for w in range(4):
            a(f"ds_read_b128 {vr(32+8*w)}, v101 offset:{2048*w}")
            a(f"ds_read_b128 {vr(36+8*w)}, v101 offset:{2048*w+1024}")
        a("s_waitcnt lgkmcnt(8)")
        a("v_max3_f32 v72, v64, v66, v68"); a("v_max_f32 v72, v72, v70"); a("v_and_b32 v72, v19, v72")
        for w in range(4): a(f"v_sub_f32 v{64+2*w}, v{64+2*w}, v72")
        for w in range(4): a(f"v_exp_f32 v{64+2*w}, v{64+2*w}")
        a("v_mul_f32 v73, v64, v65")
        for w in range(1, 4): a(f"v_fmac_f32 v73, v{64+2*w}, v{65+2*w}")
        a("v_or_b32 v72, s17, v72"); a("v_and_or_b32 v73, v73, v19, s17")
        a("s_mov_b64 exec, 0x101")
        a("buffer_store_dwordx2 v[72:73], v105, s[12:15], s39 offen sc1")
        a("s_mov_b64 exec, -1")
        a("s_waitcnt lgkmcnt(0)")
        for i in range(8): a(f"v_mul_f32 v{32+i}, v64, v{32+i}")
        for w in range(1, 4):
            for i in range(8): a(f"v_fmac_f32 v{32+i}, v{64+2*w}, v{32+8*w+i}")
        for k in range(4): self.tagpack(76+k, 32+2*k, 33+2*k)
        a("buffer_store_dwordx2 v[76:77], v103, s[12:15], s38 offen sc1")
        a("buffer_store_dwordx2 v[78:79], v104, s[12:15], s38 offen sc1")
        self.stamp(12)
        def h6_loads():
            a("buffer_load_dwordx4 v[64:67], v106, s[12:15], s41 offen sc1")
            a("buffer_load_dwordx4 v[68:71], v106, s[12:15], s41 offen offset:16 sc1")
            for i in range(4):
                a(f"buffer_load_dwordx4 {vr(112+4*i)}, v107, s[12:15], s40 offen offset:{128*i} sc1")
        h6_loads()
        a("s_waitcnt vmcnt(9)")
        self.lds_signal(F_WO)
        self.lds_wait(F_WO, 4)
        for t in range(16): a(f"ds_read_b128 {vr(192+4*t)}, v18 offset:{1024*t}")
        L = a.newlabel("G6"); E = a.newlabel("G6E")
        a(f"s_mov_b32 s33, {SPIN//8}")
        a.label(L)
        a("s_waitcnt vmcnt(0)")
        self.vcheck(list(range(112, 128)), "0x00010001", "s18")
        self.vcheck(list(range(64, 72)), "0xff", "s17", first=False)
        a("v_cmp_ne_u32 vcc, 0, v14")
        a(f"s_cbranch_vccz {E}")
        a("s_sub_u32 s33, s33, 1")
        a(f"s_cbranch_scc1 {E}")
        h6_loads()
        a(f"s_branch {L}")
        a.label(E)
        self.stamp(13)
        red = self.lweights(3)
        for i in range(4):
            for w in range(4):
                a(f"v_perm_b32 v{128+4*i+w}, v{64+2*i}, v{64+2*i}, v{4+w}")
            for w in range(4):
                a(f"v_perm_b32 v{144+4*i+w}, v{64+2*i}, v{64+2*i}, v{8+w}")
            a(f"v_mfma_f32_16x16x32_bf16 v[80:83], {vr(112+4*i)}, {vr(128+4*i)}, {'0' if i == 0 else 'v[80:83]'}")
            a(f"v_mfma_f32_16x16x32_bf16 v[80:83], {vr(112+4*i)}, {vr(144+4*i)}, v[80:83]")
        red("v_add_f32", 73)
        a("v_rcp_f32 v84, v73")
        for r in range(4): a(f"v_mul_f32 v{72+r}, v{80+r}, v84")
        for r in range(4): a(f"v_mov_b32 v{76+r}, v{72+r}")
        for r in range(4): a(f"v_permlane32_swap_b32 v{72+r}, v{76+r}")
        for r in range(4): a(f"v_add_f32 v{72+r}, v{76+r}, v{72+r} row_ror:8 row_mask:0xf bank_mask:0xf")
        a("v_cvt_pk_bf16_f32 v72, v72, v73"); a("v_cvt_pk_bf16_f32 v73, v74, v75")
        for k in range(8):
            q = k >> 1
            a(f"ds_bpermute_b32 v{24+k}, v108, v{72+(k & 1)} offset:{(16*(q >> 1) + 4*(q & 1))*4}")
        a("s_waitcnt lgkmcnt(0)")
        self.gemv16(24)
        self.publish_out(0, 96, "s100", "s101")
        self.stamp(14)
        a("s_cmp_ge_u32 s2, 112"); a("s_cbranch_scc1 S_0end")
        self.reduce_out(0, "s2")
        a("s_cmp_lg_u32 s2, 0"); a("s_cbranch_scc1 S_0end")
        a("v_mov_b32 v20, s16"); a("v_mov_b32 v21, 0")
        a("s_mov_b64 exec, 1")
        a("buffer_store_dword v20, v21, s[12:15], 0 offen sc1")
        a("s_mov_b64 exec, -1")
        a.label("S_0end")
        self.stamp(15)
        if self.diag is not None and self.diag < 100: self.diag_spin(self.diag)
        self.dump_stamps(0)

    def tail_addrs(self):
        a = self.a
        a("v_bfe_u32 v103, v1, 3, 1"); a("v_lshlrev_b32 v103, 14, v103")
        a("v_lshrrev_b32 v23, 5, v1"); a("v_lshl_add_u32 v103, v23, 12, v103")
        a("v_bfe_u32 v23, v1, 4, 1"); a("v_lshl_add_u32 v103, v23, 6, v103")
        a("v_and_b32 v23, 7, v1"); a("v_lshl_add_u32 v103, v23, 3, v103")
        a("v_add_u32 v104, 0x2000, v103")
        a("s_lshr_b32 s34, s2, 6"); a("s_lshl_b32 s34, s34, 3"); a("s_and_b32 s28, s2, 7"); a("s_add_u32 s34, s34, s28")
        a("s_bfe_u32 s35, s2, 0x30003")
        a("s_lshl_b32 s38, s35, 15"); a("s_lshl_b32 s28, s34, 7"); a("s_add_u32 s38, s38, s28"); a(f"s_add_u32 s38, s38, {OREC}")
        a("s_lshl_b32 s39, s35, 9"); a("s_lshl_b32 s28, s34, 3"); a("s_add_u32 s39, s39, s28"); a(f"s_add_u32 s39, s39, {OST}")
        a("v_lshlrev_b32 v105, 5, v1")
        a("s_lshl_b32 s40, s100, 12"); a(f"s_add_u32 s40, s40, {OREC}")
        a("s_lshr_b32 s41, s100, 2"); a("s_lshl_b32 s41, s41, 8"); a(f"s_add_u32 s41, s41, {OST}")
        a("v_lshrrev_b32 v106, 3, v1"); a("v_lshlrev_b32 v107, 9, v106"); a("v_lshlrev_b32 v106, 5, v106")
        a("v_and_b32 v23, 7, v1"); a("v_lshl_add_u32 v107, v23, 4, v107")
        a("v_lshrrev_b32 v108, 4, v1"); a("v_lshlrev_b32 v108, 2, v108")
        a("v_lshrrev_b32 v109, 4, v1"); a(f"v_mul_u32_u24 v109, {8*896}, v109")
        a("v_and_b32 v23, 15, v1"); a("v_lshl_add_u32 v109, v23, 4, v109")
        a("s_cmp_eq_u32 s101, 3"); a("s_cselect_b32 s28, 8, 16")
        a("v_cmp_le_u32 vcc, s28, v23"); a("v_mov_b32 v23, 0x7ff00000"); a("v_cndmask_b32 v109, v109, v23, vcc")
        a("s_lshl_b32 s42, s100, 6"); a("s_lshr_b32 s28, s3, 1"); a("s_lshl_b32 s28, s28, 5"); a("s_add_u32 s42, s42, s28")
        a("s_and_b32 s28, s3, 1"); a("s_add_u32 s42, s42, s28"); a("s_mul_i32 s42, s42, 896")
        a("s_lshl_b32 s28, s101, 8"); a("s_add_u32 s42, s42, s28")
        a("s_lshl_b32 s43, s3, 12")

    def swave(self):
        a = self.a; nt = self.nt
        a("v_mov_b32 v13, 0")
        a("v_lshl_add_u32 v14, v1, 2, v2")
        a("s_mov_b32 exec_hi, 0")
        a("ds_write_b32 v14, v13")
        a("s_mov_b64 exec, -1")
        a("s_mov_b64 s[20:21], s[38:39]")
        a("s_mov_b64 s[22:23], s[40:41]")
        a("s_mov_b64 s[24:25], s[44:45]")
        a("v_lshlrev_b32 v18, 4, v1")
        a("s_cmp_lt_u32 s2, 128"); a("s_cbranch_scc1 S_P")
        a("s_cmp_lt_u32 s2, 192"); a("s_cbranch_scc1 S_A")
        self.srd(4, 48, 16 << 20)
        a("s_sub_u32 s28, s2, 192"); a("s_lshl_b32 s28, s28, 18"); a("s_lshl_b32 s29, s3, 14"); a("s_add_u32 s47, s28, s29")
        a("s_mov_b32 s48, s29")
        a("s_and_b32 s28, s3, 1"); a("s_lshl_b32 s28, s28, 4"); a("v_xor_b32 v110, s28, v18")
        DB = self.DB
        assert DB <= 16 and DB % 2 == 0
        n = 0
        FT = [F_T0, F_T1, F_T2, F_T3]
        CP = self.cpat
        for q in range(4):
            for i in range(8):
                if q >= 2 and i == 0:
                    self.lds_wait([F_X0, F_X1][q-2], 8)
                    self.stamp(q - 1)
                if q in (1, 2) and 2*i == CP:
                    self.lds_wait(FT[q-1], 4)
                    for kb in range(2):
                        for t in range(8): self.row_read(128 + 64*(q-1) + 32*kb + 4*t, 2*(q-1) + kb, t)
                    self.lds_signal([F_X0, F_X1][q-1])
                if n == DB:
                    a("s_waitcnt lgkmcnt(0)"); a("s_barrier")
                    self.consts(); self.row_addrs(); self.tags()
                a(f"v_xor_b32 v23, {i*32}, v110")
                a(f"s_add_u32 m0, s48, {(q & 1)*65536 + i*2048}")
                a(f"s_add_u32 s28, s47, {q*65536 + i*2048}")
                for half in range(2):
                    if n >= DB: a(f"s_waitcnt vmcnt({DB-1})")
                    if (n - (DB - 1)) % 16 == 0 and n - (DB-1) >= 16:
                        self.lds_signal(FT[(n - (DB-1)) // 16 - 1])
                    a(f"buffer_load_dwordx4 v23, s[4:7], s28 offen offset:{1024*half} {self.P('c')} lds")
                    n += 1
        self.exch(0)
        self.lds_wait(F_H, 1, perwave=True)
        self.qabs_gather(t3=True)
        self.stamp(3)
        for kb in range(4):
            for t in range(8):
                a(f"v_mfma_f32_16x16x32_bf16 {vr(96+4*kb)}, {vr(128+32*kb+4*t)}, {vr(32+4*t)}, {'0' if t == 0 else vr(96+4*kb)}")
        self.exch(0, "main")
        self.stamp(6)
        self.kv_setup()
        self.claim()
        self.q_ops()
        self.lds_wait(F_LD, 4, sleep=1)
        a("s_branch S_next")
        a.label("S_A")
        self.p2_stage(0)
        self.kv_setup()
        a("s_and_b32 s44, s2, 7"); a("s_add_u32 s44, s44, 16")
        a("s_waitcnt lgkmcnt(0)"); a("s_barrier")
        self.kv_prologue(self.schedA, self.goA)
        a("s_branch S_pro")
        a.label("S_P")
        self.consts(); self.tags()
        self.kv_setup()
        a("s_lshr_b32 s44, s2, 6"); a("s_lshl_b32 s44, s44, 3"); a("s_and_b32 s28, s2, 7"); a("s_add_u32 s44, s44, s28")
        a("s_cmp_lg_u32 s44, 0"); a("s_cbranch_scc1 S_noinit")
        a(f"v_mov_b32 v28, {NSTATIC}"); a("v_mov_b32 v29, s16"); a("v_mov_b32 v30, 0")
        a(f"s_add_u32 s28, s49, {CNT}")
        a("s_mov_b64 exec, 1")
        a("buffer_store_dwordx2 v[28:29], v30, s[12:15], s28 offen sc1")
        a("s_mov_b64 exec, -1")
        a.label("S_noinit")
        a("s_barrier")
        a("s_cmp_lt_u32 s2, 64"); a("s_cbranch_scc1 S_P0")
        self.kv_prologue(self.schedQ, self.goQ)
        a("s_branch S_pro")
        a.label("S_P0")
        self.kv_prologue(self.sched, self.goP)
        a.label("S_pro")
        self.stamp(4)
        self.q_ops()
        self.stamp(5)
        a("s_waitcnt vmcnt(16)")
        self.unit_qk(1)
        for k in range(8): self.pv(k, 1)
        a.raw(".p2align 6")
        a.label("S_loop")
        if self.cpos == 0: self.claim()
        a("s_waitcnt vmcnt(8)")
        self.unit_qk(0, claim=(self.cpos == 1))
        if self.early:
            self.claim_check("S_exit")
            for k in range(8): self.issueK(k, 0, None)
            for k in range(8):
                a(f"s_waitcnt vmcnt(15)")
                self.pv(k, 0)
                self.issueV(k, 0, None)
            a("s_branch S_loop")
            a.label("S_next")
            self.claim_check("S_exit0")
            for k in range(8): self.issueK(k, 0, None)
            for k in range(8): self.issueV(k, 0, None)
            a("s_branch S_loop")
            a.label("S_exit")
            for k in range(4): self.issueWO(k)
            for k in range(8):
                a(f"s_waitcnt vmcnt({11-k})")
                self.pv(k, 0)
            a("s_branch S_fin")
        else:
            for k in range(8):
                a(f"s_waitcnt vmcnt({7-k})")
                self.pv(k, 0)
            self.stamp_dyn()
            a.label("S_next")
            self.claim_check("S_exit0")
            for k in range(8): self.issueK(k, 0, None if k < self.bw else self.bw)
            for k in range(8): self.issueV(k, 0, None if k + 8 < self.bw else self.bw)
            a("s_branch S_loop")
        a.label("S_exit0")
        for k in range(4): self.issueWO(k)
        a.label("S_fin")
        a.settle()
        self.xred("v_add_f32", 27, 24, 16); self.xred("v_add_f32", 27, 24, 32)
        a("s_lshl_b32 s28, s3, 11"); a(f"s_add_u32 s28, s28, {MRG}"); a("v_add_u32 v23, s28, v18")
        a("ds_write_b128 v23, v[64:67]"); a("ds_write_b128 v23, v[68:71] offset:1024")
        a("s_lshl_b32 s28, s3, 7"); a(f"s_add_u32 s28, s28, {MRGS}"); a("v_lshl_add_u32 v23, v1, 3, s28")
        a("s_mov_b64 exec, 0xffff")
        a("ds_write_b64 v23, v[26:27]")
        a("s_mov_b64 exec, -1")
        self.lds_signal(F_SD)
        self.stamp(10)
        a("s_cmp_eq_u32 s3, 0"); a("s_cbranch_scc1 S_tail")
        a("s_waitcnt vmcnt(0)")
        self.lds_signal(F_WO)
        a("s_endpgm")
        a.label("S_tail")
        a("s_setprio 3")
        self.tail()

    def issueK(self, k, slot, win):
        a = self.a
        if win: a(f"s_waitcnt vmcnt({win-1})")
        a(f"s_add_u32 m0, s47, {slot*8192 + k*1024}")
        a(f"buffer_load_dwordx4 v{224+k}, s[4:7], s30 offen {self.P('k')} lds")
    def issueV(self, k, slot, win):
        a = self.a
        if win: a(f"s_waitcnt vmcnt({win-1})")
        r, half = divmod(k, 2)
        a(f"buffer_load_dwordx4 {vr(128 + 32*slot + 4*k)}, v{93 + (r >> 1)}, s[8:11], s30 offen offset:{(r & 1)*2048 + half*256} {self.P('v')}")
    def issueWO(self, k):
        a = self.a
        a(f"s_add_u32 m0, s43, {1024*k}")
        a(f"s_add_u32 s28, s42, {2*k*896}")
        a(f"buffer_load_dwordx4 v109, s[64:67], s28 offen {self.nt} lds")
    def claim(self):
        a = self.a
        a("s_mov_b64 s[50:51], 1")
        a(f"s_atomic_add_x2 s[50:51], s[12:13], s49 offset:{CNT} glc")
    def claim_check(self, exit_label):
        a = self.a
        L = a.newlabel("CK"); OK = a.newlabel("CO")
        a(f"s_mov_b32 s33, {SPIN//8}")
        a.label(L)
        a("s_waitcnt lgkmcnt(0)")
        a("s_cmp_eq_u32 s51, s16"); a(f"s_cbranch_scc1 {OK}")
        a("s_sub_u32 s33, s33, 1"); a(f"s_cbranch_scc1 {exit_label}")
        self.claim()
        a(f"s_branch {L}")
        a.label(OK)
        a("s_cmp_ge_u32 s50, 128"); a(f"s_cbranch_scc1 {exit_label}")
        self.unit_off("s50")
    def unit_off(self, sidx):
        a = self.a
        a(f"s_mul_i32 s30, {sidx}, 37"); a("s_and_b32 s30, s30, 127"); a("s_lshl_b32 s30, s30, 15"); a("s_add_u32 s30, s30, s48")
    def kv_setup(self):
        a = self.a
        a("v_lshrrev_b32 v95, 5, v1"); a("v_lshlrev_b32 v94, 2, v95"); a("v_and_b32 v92, 31, v1"); a("v_xor_b32 v92, v92, v94")
        a("v_lshlrev_b32 v92, 4, v92"); a("v_lshl_add_u32 v92, v95, 9, v92")
        for k in range(8):
            a(f"v_xor_b32 v{224+k}, {(8*(k & 1) + (k >> 1))*16 + k*1024}, v92")
        a("s_lshl_b32 s47, s3, 14"); a("s_add_u32 s47, s47, 16384")
        a("v_and_b32 v94, 3, v1"); a("v_lshlrev_b32 v94, 2, v94"); a("v_bfe_u32 v95, v1, 2, 2"); a("v_add_u32 v94, v94, v95")
        a("v_lshlrev_b32 v92, 9, v94")
        a("v_lshrrev_b32 v95, 4, v1"); a("v_and_b32 v94, 15, v1"); a("v_xor_b32 v93, v95, v94"); a("v_lshl_add_u32 v92, v93, 4, v92")
        a("v_add_u32 v92, s47, v92")
        for t in range(4): a(f"v_xor_b32 v{232+t}, {64*t}, v92")
        a("v_lshlrev_b32 v93, 9, v95"); a("v_lshl_add_u32 v93, v94, 4, v93")
        a("v_add_u32 v94, 0x1000, v93")
        a("s_bfe_u32 s45, s2, 0x30003")
        a("s_lshr_b32 s48, s2, 6"); a("s_add_u32 s48, s48, s2"); a("s_add_u32 s48, s48, s3"); a("s_and_b32 s48, s48, 3")
        a("s_lshl_b32 s49, s45, 2"); a("s_add_u32 s49, s49, s48"); a("s_lshl_b32 s49, s49, 7")
        a("s_lshl_b32 s45, s45, 22")
        a(f"s_mov_b32 s46, {CEXP:#x}")
        a("s_add_u32 s4, s20, s45"); a("s_addc_u32 s5, s21, 0"); a(f"s_mov_b32 s6, {4<<20}"); a("s_mov_b32 s7, 0x00020000")
        a("s_add_u32 s8, s22, s45"); a("s_addc_u32 s9, s23, 0"); a(f"s_mov_b32 s10, {4<<20}"); a("s_mov_b32 s11, 0x00020000")
        self.srd(64, 24, 4096*896)
        a("s_lshl_b32 s48, s48, 13")
        a("s_mov_b32 s52, 16")
        a("v_mov_b32 v26, 0xf149f2ca"); a("v_mov_b32 v27, 0")
        for r in range(8): a(f"v_mov_b32 v{64+r}, 0")
        self.tail_addrs()
    def kv_prologue(self, sched, go):
        a = self.a
        self.unit_off("s44")
        for i in range(32):
            win = self.D
            for upto, w in sched:
                if i < upto: win = w; break
            if i < win: win = None
            if i == go: self.lds_signal(F_GO)
            if i == 16:
                a("s_add_u32 s44, s44, 24"); self.unit_off("s44")
            u, k = divmod(i, 16)
            if k < 8: self.issueK(k, 1 - u, win)
            else: self.issueV(k - 8, 1 - u, win)
    def q_ops(self):
        a = self.a
        a("v_bfe_u32 v23, v1, 3, 1"); a("v_lshlrev_b32 v23, 9, v23"); a("v_lshrrev_b32 v24, 4, v1"); a("v_lshl_add_u32 v23, v24, 4, v23")
        a(f"v_add_u32 v23, {QA}, v23")
        self.lds_wait(F_QA, 4, sleep=1)
        for t in range(8): a(f"ds_read_b128 {vr(32+4*t)}, v23 offset:{64*t}")
        a("s_waitcnt lgkmcnt(0)")
    def pv(self, k, slot):
        r, half = divmod(k, 2)
        self.a(f"v_mfma_f32_16x16x32_bf16 {vr(64+4*half)}, {vr(128+32*slot+4*k)}, {vr(76+4*r)}, {vr(64+4*half)}")
    def unit_qk(self, slot, claim=False):
        a = self.a; M, Lr = 26, 27
        for t in range(8):
            a(f"ds_read_b128 {vr(192+4*t)}, v{232+(t & 3)} offset:{slot*8192 + (t >> 2)*256}")
        for t in range(8):
            a(f"s_waitcnt lgkmcnt({7-t})")
            a(f"v_mfma_f32_16x16x32_bf16 v[72:75], {vr(192+4*t)}, {vr(32+4*t)}, {'0' if t == 0 else 'v[72:75]'}")
        if claim: self.claim()
        if self.round_s:
            a("v_cvt_pk_bf16_f32 v28, v72, v73"); a("v_cvt_pk_bf16_f32 v29, v74, v75")
            a("v_lshlrev_b32 v72, 16, v28"); a("v_and_b32 v73, 0xffff0000, v28")
            a("v_lshlrev_b32 v74, 16, v29"); a("v_and_b32 v75, 0xffff0000, v29")
        a("v_max3_f32 v28, v72, v73, v74"); a("v_max_f32 v28, v28, v75")
        self.xred("v_max_f32", 28, 29, 16); self.xred("v_max_f32", 28, 29, 32)
        a("v_mul_f32 v28, s46, v28")
        a(f"v_max_f32 v28, v28, v{M}")
        a(f"v_sub_f32 v30, v{M}, v28"); a("v_exp_f32 v30, v30")
        a(f"v_mov_b32 v{M}, v28")
        for r in range(4): a(f"v_fma_f32 v{72+r}, v{72+r}, s46, -v{M}")
        for r in range(4): a(f"v_exp_f32 v{72+r}, v{72+r}")
        for r in range(8): a(f"v_mul_f32 v{64+r}, v{64+r}, v30")
        a(f"v_fma_f32 v{Lr}, v{Lr}, v30, v72")
        for r in range(1, 4): a(f"v_add_f32 v{Lr}, v{Lr}, v{72+r}")
        a("v_cvt_pk_bf16_f32 v28, v72, v73"); a("v_cvt_pk_bf16_f32 v29, v74, v75")
        for r in range(4):
            for w in range(4):
                a(f"v_perm_b32 v{76+4*r+w}, v{28+r//2}, v{28+r//2}, v{(8 if r & 1 else 4)+w}")

def psched(x): return tuple(tuple(int(v) for v in p.split(':')) for p in x.split(',') if p)
if __name__ == "__main__":
    import argparse
    ap = argparse.ArgumentParser()
    ap.add_argument("out"); ap.add_argument("--nt", default="nt")
    for k, v in (("D", 8), ("DB", 8), ("goP", 12), ("goA", 6), ("wqd", 1), ("p2d", 4), ("cpat", 10), ("pf", 1), ("ldack", 0), ("cpos", 0), ("early", 0), ("lazy", 20), ("goQ", 10), ("bw", 16)):
        ap.add_argument("--" + k, type=int, default=v)
    ap.add_argument("--sched", default="4:1,12:4"); ap.add_argument("--schedA", default="6:4"); ap.add_argument("--schedQ", default="10:4")
    ap.add_argument("--abl", default=""); ap.add_argument("--nostamps", action="store_true"); ap.add_argument("--diag", type=int, default=None)
    x = ap.parse_args()
    g = G(nt=x.nt, D=x.D, DB=x.DB, stamps=not x.nostamps, diag=x.diag, sched=psched(x.sched), schedA=psched(x.schedA), goP=x.goP, goA=x.goA, wqd=x.wqd, p2d=x.p2d, cpat=x.cpat, pf=x.pf, ldack=x.ldack, cpos=x.cpos, early=x.early, abl=x.abl, lazy=x.lazy, schedQ=psched(x.schedQ), goQ=x.goQ, bw=x.bw)
    open(x.out, "w").write(g.build())
```
